```python
import torch

def _softmax(x, axis=-1):
    return torch.softmax(x, dim=axis)
def _gelu(x):
    return torch.nn.functional.gelu(x, approximate="tanh")
def _silu(x):
    return torch.nn.functional.silu(x)
def _sigmoid(x):
    return torch.sigmoid(x)
def _layernorm(x, axis=-1, eps=1e-5):
    m = x.mean(dim=axis, keepdim=True)
    v = x.var(dim=axis, keepdim=True, unbiased=False)
    return (x - m) / torch.sqrt(v + eps)
def _scatter_add(tgt, idx, src, axis=0):
    return tgt.clone().index_add_(axis, idx, src)
def _segment_sum(src, seg, n):
    out = torch.zeros((n,) + src.shape[1:], dtype=src.dtype)
    return out.index_add_(0, seg, src)
def _pad(x, pw):
    flat = tuple(v for pair in reversed(pw) for v in pair)
    return torch.nn.functional.pad(x, flat)

kernel_name = 'interleave_layers__ssm_conv_s4d__glu_gated_geglu__prompt'

def setup_inputs():

    _w = (lambda a: (lambda t: t.to(torch.bfloat16) if t.is_floating_point() else t)(torch.as_tensor(a)))
    def _A_setup():
        Bsz, L, D, N = 1, 2048, 512, 128
        return {
            "u": _w((lambda *s: torch.randn(*s, dtype=torch.bfloat16) * 0.05)(Bsz, L, D)),
            "log_A_real": _w((lambda *s: torch.randn(*s, dtype=torch.bfloat16) * 3.2)(D, N) * 0.5),
            "A_imag": _w((lambda *s: torch.randn(*s, dtype=torch.bfloat16) * 0.05)(D, N) * 3.14),
            "C_real": _w((lambda *s: torch.randn(*s, dtype=torch.bfloat16) * 0.05)(D, N) / N ** 0.5),
            "C_imag": _w((lambda *s: torch.randn(*s, dtype=torch.bfloat16) * 0.05)(D, N) / N ** 0.5),
            "log_dt": _w((lambda *s: torch.randn(*s, dtype=torch.bfloat16) * 0.05)(D) * 0.5 - 4.0),
            "D_skip": _w((lambda *s: torch.randn(*s, dtype=torch.bfloat16) * 0.05)(D)),
        }
    _A_in = _A_setup()

    def _B_setup():
        B, S, Dm, Df = 1, 2048, 512, 1376
        return {
            "x": _w((lambda *s: torch.randn(*s, dtype=torch.bfloat16) * 0.05)(B, S, Dm)),
            "w_gate": _w((lambda *s: torch.randn(*s, dtype=torch.bfloat16) * 0.8)(Dm, Df) * (Dm ** -0.5)),
            "w_up": _w((lambda *s: torch.randn(*s, dtype=torch.bfloat16) * 0.8)(Dm, Df) * (Dm ** -0.5)),
            "w_down": _w((lambda *s: torch.randn(*s, dtype=torch.bfloat16) * 0.8)(Df, Dm) * (Df ** -0.5)),
        }
    _B_in = _B_setup()

    return {
        "A_u": _A_in["u"],
        "A_log_A_real": _A_in["log_A_real"],
        "A_A_imag": _A_in["A_imag"],
        "A_C_real": _A_in["C_real"],
        "A_C_imag": _A_in["C_imag"],
        "A_log_dt": _A_in["log_dt"],
        "A_D_skip": _A_in["D_skip"],
        "B_x": _B_in["x"],
        "B_w_gate": _B_in["w_gate"],
        "B_w_up": _B_in["w_up"],
        "B_w_down": _B_in["w_down"],
    }

def reference(A_u, A_log_A_real, A_A_imag, A_C_real, A_C_imag, A_log_dt, A_D_skip, B_x, B_w_gate, B_w_up, B_w_down):
    def _A_ref(u, log_A_real, A_imag, C_real, C_imag, log_dt, D_skip):
        L = u.shape[1]
        dt = torch.exp(log_dt)
        A = -torch.exp(log_A_real) + 1j * A_imag
        C = (C_real + 1j * C_imag) * dt[:, None]
        pos = (lambda x, dt: x.to(dt))(torch.arange(L), log_dt.dtype)
        P = torch.exp((A * dt[:, None])[:, :, None] * pos[None, None, :])
        K = 2.0 * torch.einsum("dn,dnl->dl", C, P).real
        L2 = 2 * L
        u_t = (lambda x, *d: x.permute(*d))(u, 0, 2, 1)
        Kf = (lambda x, *a, **k: torch.fft.rfft(x.float(), *a, **k))(K, L2)
        Uf = (lambda x, *a, **k: torch.fft.rfft(x.float(), *a, **k))(u_t, L2)
        y = (lambda x, *a, **k: torch.fft.irfft(x, *a, **k).to(torch.bfloat16))(Uf * Kf[None, :, :], L2)[:, :, :L]
        y = (lambda x, *d: x.permute(*d))(y, 0, 2, 1)
        return y + u * D_skip[None, None, :]

    def _B_ref(x, w_gate, w_up, w_down):
        g = torch.einsum("bsd,df->bsf", x, w_gate)
        u = torch.einsum("bsd,df->bsf", x, w_up)
        h = _gelu(g) * u
        return torch.einsum("bsf,fd->bsd", h, w_down)

    x = A_u
    x = x + _A_ref(_layernorm(x, axis=-1), A_log_A_real, A_A_imag, A_C_real, A_C_imag, A_log_dt, A_D_skip)
    x = x + _B_ref(_layernorm(x, axis=-1), B_w_gate, B_w_up, B_w_down)
    x = x + _A_ref(_layernorm(x, axis=-1), A_log_A_real, A_A_imag, A_C_real, A_C_imag, A_log_dt, A_D_skip)
    x = x + _B_ref(_layernorm(x, axis=-1), B_w_gate, B_w_up, B_w_down)
    return x
```

```python
import re

TRANS = ("v_exp_f32", "v_log_f32", "v_rcp_f32", "v_rsq_f32", "v_sqrt_f32", "v_sin_f32", "v_cos_f32",
         "v_rcp_iflag_f32")

_reg_re = re.compile(r"^(-|abs\(|\|)?([vsa])(\d+|\[(\d+):(\d+)\])\)?\|?$")


def parse_reg(tok):
    tok = tok.strip()
    if tok in ("vcc",):
        return [("s", 106), ("s", 107)]
    if tok == "vcc_lo":
        return [("s", 106)]
    if tok == "vcc_hi":
        return [("s", 107)]
    if tok == "exec":
        return [("s", 126), ("s", 127)]
    if tok == "m0":
        return [("s", 124)]
    m = _reg_re.match(tok)
    if not m:
        return []
    kind = m.group(2)
    if m.group(4) is not None:
        return [(kind, i) for i in range(int(m.group(4)), int(m.group(5)) + 1)]
    return [(kind, int(m.group(3)))]


class Ins:
    __slots__ = ("text", "op", "ops", "mods", "dst", "src", "cls", "label", "target", "passes", "srcC", "srcAB",
                 "states")

    def __init__(self, text):
        self.text = text
        self.label = None
        self.target = None
        self.dst = []
        self.src = []
        self.srcC = []
        self.srcAB = []
        self.passes = 0
        self.states = 1
        t = text.split(";")[0].strip()
        if t.endswith(":"):
            self.label = t[:-1]
            self.op = None
            self.cls = "label"
            self.states = 0
            return
        if t == "" or t.startswith("."):
            self.op = None
            self.cls = "none"
            self.states = 0
            return
        parts = t.split(None, 1)
        self.op = op = parts[0]
        rest = parts[1] if len(parts) > 1 else ""
        toks = [x.strip() for x in re.split(r",(?![^\[]*\])", rest)] if rest else []
        ops = []
        mods = []
        for i, tk in enumerate(toks):
            sp = tk.split()
            if not sp:
                continue
            ops.append(sp[0])
            mods += sp[1:]
        self.ops = ops
        self.mods = mods
        regs = [parse_reg(o) for o in ops]
        base = op.replace("_e32", "").replace("_e64", "").replace("_dpp", "").replace("_sdwa", "")
        if op.startswith("v_mfma"):
            self.cls = "mfma"
            self.dst = regs[0]
            self.srcAB = regs[1] + regs[2]
            self.srcC = regs[3] if len(regs) > 3 else []
            self.src = self.srcAB + self.srcC
            if "32x32x16" in op or "32x32x8" in op:
                self.passes = 8
            elif "16x16x32" in op or "16x16x16" in op:
                self.passes = 4
            else:
                raise ValueError("unknown mfma " + op)
        elif op.startswith("v_"):
            self.cls = "valu"
            if base.startswith("v_cmp"):
                self.dst = regs[0]
                self.src = sum(regs[1:], [])
            elif base in ("v_add_co_u32", "v_sub_co_u32", "v_subrev_co_u32", "v_addc_co_u32", "v_subb_co_u32",
                          "v_mad_u64_u32", "v_div_scale_f32"):
                self.dst = regs[0] + regs[1]
                self.src = sum(regs[2:], [])
            elif base.startswith("v_permlane16_swap") or base.startswith("v_permlane32_swap") or base == "v_swap_b32":
                self.dst = regs[0] + regs[1]
                self.src = regs[0] + regs[1]
            elif base == "v_nop":
                pass
            else:
                self.dst = regs[0]
                self.src = sum(regs[1:], [])
                if base.startswith("v_fmac") or base.startswith("v_dot2c") or base.startswith("v_pk_fmac") \
                        or base.startswith("v_writelane") or any(m.startswith("row_") or m.startswith("quad_perm")
                                                                 or m.startswith("wave_") for m in mods):
                    self.src = self.src + regs[0]
                if base == "v_cndmask_b32" and len(ops) == 3:
                    self.src = self.src + parse_reg("vcc")
        elif op.startswith("buffer_") or op.startswith("global_") or op.startswith("flat_"):
            self.cls = "vmem"
            is_lds = "lds" in mods or "_lds_" in op
            if "load" in op and not is_lds:
                self.dst = regs[0]
                self.src = sum(regs[1:], [])
            elif "atomic" in op and "sc0" in mods:
                self.dst = regs[0]
                self.src = sum(regs, [])
            else:
                self.src = sum(regs, [])
            if is_lds:
                self.src = self.src + parse_reg("m0")
        elif op.startswith("ds_"):
            self.cls = "ds"
            if "read" in op or "permute" in op or "swizzle" in op or "_rtn" in op:
                self.dst = regs[0]
                self.src = sum(regs[1:], [])
                if "d16" in op:
                    self.src = self.src + regs[0]
            else:
                self.src = sum(regs, [])
        elif op.startswith("s_"):
            self.cls = "salu"
            if op == "s_nop":
                self.states = int(ops[0], 0) + 1
                self.cls = "nop"
            elif op.startswith("s_branch") or op.startswith("s_cbranch"):
                self.cls = "branch"
                self.target = ops[0]
            elif op == "s_endpgm":
                self.cls = "end"
            elif op.startswith("s_cmp") or op in ("s_waitcnt", "s_barrier", "s_setprio", "s_sleep"):
                self.src = sum(regs, [])
            elif op.startswith("s_load") or op.startswith("s_buffer_load") or op.startswith("s_memtime") \
                    or op.startswith("s_memrealtime") or op.startswith("s_atomic"):
                self.cls = "smem"
                self.dst = regs[0]
                self.src = sum(regs[1:], [])
            else:
                self.dst = regs[0] if regs else []
                self.src = sum(regs[1:], [])
                if "saveexec" in op:
                    self.dst = self.dst + parse_reg("exec")
        else:
            raise ValueError("unknown instr: " + text)

    def is_trans(self):
        return self.cls == "valu" and self.op.replace("_e32", "").replace("_e64", "") in TRANS

    def is_dpp(self):
        return self.cls == "valu" and any(m.startswith("row_") or m.startswith("quad_perm") or m.startswith("wave_")
                                          for m in self.mods)

    def is_dot(self):
        return self.cls == "valu" and self.op.startswith("v_dot")


def _ov(a, b):
    return bool(set(a) & set(b))


def _vg(x):
    return [r for r in x if r[0] in ("v", "a")]


def _sg(x):
    return [r for r in x if r[0] == "s"]


def need(p, c):
    n = 0
    if p.cls == "valu":
        pv = _vg(p.dst)
        ps = _sg(p.dst)
        if c.cls == "mfma" and _ov(pv, c.src):
            n = max(n, 3 if p.is_dot() else 2)
        if p.is_trans() and c.cls in ("valu",) and not c.is_trans() and _ov(pv, c.src + c.dst):
            n = max(n, 1)
        if p.is_trans() and c.cls in ("vmem", "ds") and _ov(pv, c.src):
            n = max(n, 1)
        if c.cls == "vmem" and _ov(ps, c.src):
            n = max(n, 5)
        if c.cls == "valu" and _ov(ps, c.src):
            n = max(n, 4 if c.op.startswith("v_readlane") or c.op.startswith("v_writelane") else 2)
        if c.cls == "valu" and (c.op.startswith("v_readlane") or c.op.startswith("v_readfirstlane")) \
                and _ov(pv, c.src):
            n = max(n, 1)
        if c.cls == "valu" and (c.is_dpp() or c.op.startswith("v_permlane")) and _ov(pv, c.src):
            n = max(n, 2)
        if p.is_dot() and c.cls in ("valu", "vmem", "ds"):
            if c.cls == "valu" and c.op == p.op:
                ab = sum([parse_reg(o) for o in c.ops[1:3]], [])
                if _ov(pv, ab):
                    n = max(n, 3)
            elif _ov(pv, c.src + c.dst):
                n = max(n, 3)
        if any(m.startswith("dst_sel") for m in p.mods) and c.cls == "valu" and _ov(pv, c.src + c.dst):
            n = max(n, 1)
        if _ov(ps, parse_reg("exec")):
            if c.cls == "mfma":
                n = max(n, 4)
            if c.cls == "valu":
                n = max(n, 5)
    elif p.cls == "mfma":
        P = p.passes
        if c.cls == "mfma":
            if _ov(p.dst, c.srcAB):
                n = max(n, P + 4)
            if _ov(p.dst, c.srcC):
                if c.srcC == p.dst and c.passes == p.passes:
                    pass
                else:
                    n = max(n, P + 2)
            elif _ov(p.dst, c.dst):
                n = max(n, P + 2)
        elif c.cls in ("valu", "vmem", "ds"):
            if _ov(p.dst, c.src + c.dst):
                n = max(n, P + 4)
            if c.cls == "valu" and _ov(p.srcC, c.dst):
                n = max(n, P - 1)
    elif p.cls == "vmem":
        if ("store" in p.op or "atomic" in p.op) and ("x4" in p.op or "x3" in p.op or "x2" in p.op):
            data = _vg(parse_reg(p.ops[0]) if p.op.startswith("buffer") else parse_reg(p.ops[1]))
            if _ov(data, c.dst):
                n = max(n, 2 if c.cls in ("valu", "mfma") else 1)
    elif p.cls == "salu":
        if _ov(p.dst, parse_reg("m0")) and c.cls in ("vmem", "ds") and _ov(parse_reg("m0"), c.src):
            n = max(n, 1)
    return n


MAXD = 21


def insert_nops(lines):
    ins = [Ins(l) for l in lines]
    changed = True
    it = 0
    while changed:
        changed = False
        it += 1
        assert it < 50
        labels = {x.label: i for i, x in enumerate(ins) if x.label}
        preds = {}
        for i, x in enumerate(ins):
            pl = []
            if i > 0:
                prev = ins[i - 1]
                if not (prev.cls == "end" or (prev.cls == "branch" and prev.op == "s_branch")):
                    pl.append(i - 1)
            preds[i] = pl
        for i, x in enumerate(ins):
            if x.cls == "branch" and x.target in labels:
                preds[labels[x.target]].append(i)
        out = []
        for i, c in enumerate(ins):
            if c.cls in ("label", "none", "nop") or c.op is None:
                out.append(c)
                continue
            worst = 0
            stack = [(p, 0) for p in preds[i]]
            seen = set()
            while stack:
                j, dist = stack.pop()
                if (j, dist) in seen:
                    continue
                seen.add((j, dist))
                p = ins[j]
                if p.op is not None and p.cls != "nop":
                    nd = need(p, c)
                    if nd > dist:
                        worst = max(worst, nd - dist)
                d2 = dist + p.states
                if d2 < MAXD:
                    for q in preds[j]:
                        stack.append((q, d2))
            if worst > 0:
                changed = True
                w = worst
                while w > 0:
                    k = min(w, 16)
                    out.append(Ins(f"    s_nop {k - 1}"))
                    w -= k
                out.append(c)
                out += ins[i + 1:]
                break
            out.append(c)
        ins = out
        if changed:
            it = 0 if len(ins) < 10 ** 9 else it
    return [x.text for x in ins]


def insert_nops_fast(lines):
    ins = [Ins(l) for l in lines]
    for _round in range(20):
        labels = {x.label: i for i, x in enumerate(ins) if x.label}
        brs = {}
        for i, x in enumerate(ins):
            if x.cls == "branch" and x.target in labels:
                brs.setdefault(x.target, []).append(x)
        out = []
        changed = False
        oldpos = {id(x): i for i, x in enumerate(ins)}

        def walk(lst, j, dist, c, seen):
            worst = 0
            while j >= 0 and dist < MAXD:
                p = lst[j]
                if p.cls == "end" or (p.cls == "branch" and p.op == "s_branch"):
                    if not (seen and seen[-1] is p):
                        break
                if p.label:
                    for b in brs.get(p.label, []):
                        if any(b is s for s in seen):
                            continue
                        worst = max(worst, walk(ins, oldpos[id(b)], dist, c, seen + [b]))
                elif p.op is not None and p.cls != "nop":
                    nd = need(p, c)
                    if nd > dist:
                        worst = max(worst, nd - dist)
                dist += p.states
                j -= 1
            return worst

        for c in ins:
            if c.op is None or c.cls == "nop":
                out.append(c)
                continue
            w = walk(out, len(out) - 1, 0, c, [])
            if w > 0:
                changed = True
                while w > 0:
                    k = min(w, 16)
                    out.append(Ins(f"    s_nop {k - 1}"))
                    w -= k
            out.append(c)
        ins = out
        if not changed:
            break
    return [x.text for x in ins]


class Asm:
    def __init__(self):
        self.L = []

    def __call__(self, s):
        for line in s.strip("\n").split("\n"):
            line = line.strip()
            if not line:
                continue
            if line.endswith(":") or line.startswith("."):
                self.L.append(line)
            else:
                self.L.append("    " + line)

    def label(self, name):
        self.L.append(name + ":")

    def lines(self):
        return self.L


def vr(base, n=1):
    return f"v{base}" if n == 1 else f"v[{base}:{base + n - 1}]"


def sr(base, n=1):
    return f"s{base}" if n == 1 else f"s[{base}:{base + n - 1}]"


def f32bits(x):
    import struct
    return "0x%08x" % struct.unpack("<I", struct.pack("<f", x))[0]


class Alloc:
    def __init__(self, start=0, limit=256):
        self.n = start
        self.limit = limit
        self.hi = start

    def __call__(self, n=1, align=None):
        if align is None:
            align = 1 if n == 1 else 2
        self.n = (self.n + align - 1) // align * align
        b = self.n
        self.n += n
        assert self.n <= self.limit, f"register overflow {self.n}"
        self.hi = max(self.hi, self.n)
        return b

    def mark(self):
        return self.n

    def release(self, m):
        self.n = m


class Cnt:
    def __init__(self, a, name, maxv):
        self.a = a
        self.name = name
        self.maxv = maxv
        self.q = []

    def issue(self, tag):
        self.q.append(tag)

    def room(self, n=1):
        pass

    def wait(self, tag):
        idx = [i for i, t in enumerate(self.q) if t == tag]
        if not idx:
            return
        last = idx[-1]
        keep = min(len(self.q) - 1 - last, self.maxv - 1)
        self.a(f"s_waitcnt {self.name}({keep})")
        self.q = self.q[len(self.q) - keep:] if keep else []

    def waitall(self):
        if self.q:
            self.a(f"s_waitcnt {self.name}(0)")
        self.q = []


def srd(a, s, base_lo, base_hi, size, off=None, off_hi=None):
    if off is None:
        a(f"s_mov_b32 s{s}, {base_lo}")
        a(f"s_mov_b32 s{s + 1}, {base_hi}")
    else:
        a(f"s_add_u32 s{s}, {base_lo}, {off}")
        a(f"s_addc_u32 s{s + 1}, {base_hi}, 0")
    a(f"s_mov_b32 s{s + 2}, {size}")
    a(f"s_mov_b32 s{s + 3}, 0x20000")


def kernel_desc(name, vgpr, agpr=0, sgpr=102):
    acc = (vgpr + 3) // 4 * 4
    nfv = acc + agpr if agpr else vgpr
    return f""".amdhsa_kernel {name}
  .amdhsa_next_free_vgpr {nfv}
  .amdhsa_next_free_sgpr {sgpr}
  .amdhsa_accum_offset {acc}
  .amdhsa_group_segment_fixed_size 0
  .amdhsa_kernarg_size 112
  .amdhsa_user_sgpr_count 2
  .amdhsa_user_sgpr_kernarg_segment_ptr 1
  .amdhsa_system_sgpr_workgroup_id_x 1
  .amdhsa_float_denorm_mode_32 3
.end_amdhsa_kernel"""
```

```python
import sys, math
sys.path.insert(0, "gen")
from asmlib import *

NAME = "interleave_layers__ssm_conv_s4d__glu_gated_geglu__prompt"
XT0, XT1, XT2, XT3 = 0x0000000, 0x0200000, 0x0400000, 0x0600000
HB = 0x0800000
WGU = 0x1000000
WD = 0x1400000
KR = 0x1600000
CS = 0x1800000
ST0 = 0x1810000
ST2 = 0x1820000
NT = 172
LOG2E = 1.4426950408889634
ONES_BF16 = "0x3f803f80"


def cmul(a, d, x, y, t):
    a(f"v_pk_mul_f32 {vr(t,2)}, {vr(x,2)}, {vr(y,2)} op_sel:[0,0] op_sel_hi:[0,1]")
    a(f"v_pk_fma_f32 {vr(d,2)}, {vr(x,2)}, {vr(y,2)}, {vr(t,2)} op_sel:[1,1,0] op_sel_hi:[1,0,1] neg_lo:[1,0,0]")


def rnd_bf16(a, d, s):
    a(f"v_cvt_pk_bf16_f32 v{d}, v{s}, v{s}")
    a(f"v_lshlrev_b32 v{d}, 16, v{d}")


def k_prep():
    a = Asm()
    a("s_load_dwordx2 s[4:5], s[0:1], 104")
    a("s_cmp_lt_u32 s2, 256\ns_cbranch_scc1 P_K")
    a("s_cmp_lt_u32 s2, 320\ns_cbranch_scc1 P_X")
    a("s_cmp_lt_u32 s2, 406\ns_cbranch_scc1 P_GU")
    a("s_cmp_lt_u32 s2, 492\ns_cbranch_scc1 P_D")
    a("s_endpgm")
    hi = 0
    RS = 528
    CHS = 28160
    YO = 21 * RS
    TO = 2 * CHS
    a.label("P_K")
    V = Alloc(1)
    a("s_load_dwordx8 s[8:15], s[0:1], 8")
    a("s_load_dwordx2 s[16:17], s[0:1], 40")
    off, off2 = V(), V()
    lar, aim, cr, ci, ldt = V(), V(), V(), V(), V()
    a(f"s_lshl_b32 s3, s2, 9")
    a(f"v_lshl_add_u32 v{off}, v0, 1, s3")
    a(f"v_lshrrev_b32 v{off2}, 7, v0")
    a(f"s_lshl_b32 s6, s2, 2")
    a(f"v_lshl_add_u32 v{off2}, v{off2}, 1, s6")
    a("s_waitcnt lgkmcnt(0)")
    a(f"global_load_ushort v{ldt}, v{off2}, s[16:17]")
    a(f"global_load_ushort v{lar}, v{off}, s[8:9]")
    a(f"global_load_ushort v{aim}, v{off}, s[10:11]")
    a(f"global_load_ushort v{cr}, v{off}, s[12:13]")
    a(f"global_load_ushort v{ci}, v{off}, s[14:15]")
    waddr = V()
    t0, t1 = V(), V()
    a(f"v_lshrrev_b32 v{t0}, 7, v0")
    a(f"v_mul_u32_u24 v{t0}, {CHS}, v{t0}")
    a(f"v_and_b32 v{t1}, 127, v0")
    a(f"v_lshl_add_u32 v{waddr}, v{t1}, 2, v{t0}")
    gad = V(8)
    jj = V()
    a(f"v_lshlrev_b32 v{jj}, 3, v0")
    a(f"v_sub_u32 v{jj}, 2047, v{jj}")
    a(f"v_cmp_gt_u32 vcc, 240, v0")
    a(f"s_mov_b32 s7, {-2*0x4280 + TO}")
    for i in range(0, 8, 2):
        a(f"v_subrev_u32 v{t0}, {i}, v{jj}")
        a(f"v_subrev_u32 v{t1}, {i+1}, v{jj}")
        a(f"v_cvt_f32_u32 v{gad+i}, v{t0}")
        a(f"v_cvt_f32_u32 v{gad+i+1}, v{t1}")
        a(f"v_cvt_pk_bf16_f32 v{gad+i+1}, v{gad+i}, v{gad+i+1}")
        a(f"v_and_b32 v{gad+i}, 0xffff, v{gad+i+1}")
        a(f"v_lshrrev_b32 v{gad+i+1}, 16, v{gad+i+1}")
        a(f"v_lshl_add_u32 v{gad+i}, v{gad+i}, 1, s7")
        a(f"v_lshl_add_u32 v{gad+i+1}, v{gad+i+1}, 1, s7")
        a(f"v_lshlrev_b32 v{t0}, 1, v{t0}")
        a(f"v_lshlrev_b32 v{t1}, 1, v{t1}")
        a(f"v_add_u32 v{t0}, {TO}, v{t0}")
        a(f"v_add_u32 v{t1}, {TO}, v{t1}")
        a(f"v_cndmask_b32 v{gad+i}, v{t0}, v{gad+i}, vcc")
        a(f"v_cndmask_b32 v{gad+i+1}, v{t1}, v{gad+i+1}, vcc")
    a("s_waitcnt vmcnt(0)")
    for r in (ldt, lar, aim, cr, ci):
        a(f"v_lshlrev_b32 v{r}, 16, v{r}")
    a(f"v_mul_f32 v{ldt}, {f32bits(LOG2E)}, v{ldt}")
    a(f"v_mul_f32 v{lar}, {f32bits(LOG2E)}, v{lar}")
    a(f"v_exp_f32 v{ldt}, v{ldt}")
    a(f"v_exp_f32 v{lar}, v{lar}")
    rnd_bf16(a, ldt, ldt)
    rnd_bf16(a, lar, lar)
    dt = ldt
    a(f"v_mul_f32 v{lar}, v{lar}, v{dt}")
    a(f"v_mul_f32 v{aim}, v{aim}, v{dt}")
    a(f"v_mul_f32 v{lar}, {f32bits(-LOG2E)}, v{lar}")
    a(f"v_mul_f32 v{aim}, {f32bits(1/(2*math.pi))}, v{aim}")
    X0 = V(2)
    a(f"v_add_f32 v{dt}, v{dt}, v{dt}")
    a(f"v_mul_f32 v{X0}, v{cr}, v{dt}")
    a(f"v_mul_f32 v{X0+1}, v{ci}, v{dt}")
    w1, w8, w256 = V(2), V(2), V(2)
    tm = [V() for _ in range(4)]

    def cexp(d, e):
        a(f"v_mul_f32 v{tm[0]}, {f32bits(float(e))}, v{lar}")
        a(f"v_mul_f32 v{tm[1]}, {f32bits(float(e))}, v{aim}")
        a(f"v_exp_f32 v{tm[0]}, v{tm[0]}")
        a(f"v_fract_f32 v{tm[1]}, v{tm[1]}")
        a(f"v_cos_f32 v{tm[2]}, v{tm[1]}")
        a(f"v_sin_f32 v{tm[3]}, v{tm[1]}")
        a(f"v_mul_f32 v{d}, v{tm[0]}, v{tm[2]}")
        a(f"v_mul_f32 v{d+1}, v{tm[0]}, v{tm[3]}")
    cexp(w8, 8)
    cexp(w1, 1)
    cexp(w256, 256)
    pk = [V() for _ in range(4)]
    pki = [0]

    def putX(row, p):
        r = pk[pki[0] % 4]; pki[0] += 1
        a(f"v_cvt_pk_bf16_f32 v{r}, v{p}, -v{p+1}")
        a(f"ds_write_b32 v{waddr}, v{r} offset:{row*RS}")

    def putY(col, p):
        r = pk[pki[0] % 4]; pki[0] += 1
        a(f"v_cvt_pk_bf16_f32 v{r}, v{p}, v{p+1}")
        a(f"ds_write_b32 v{waddr}, v{r} offset:{YO+col*RS}")
    X = [X0] + [V(2) for _ in range(7)]
    Y = [V(2) for _ in range(4)]
    w32 = V(2)
    tA, tB = V(2), V(2)
    xs, ys = [], []
    xs.append(lambda: putX(0, X[0]))
    for k in range(1, 8):
        xs.append(lambda k=k: (cmul(a, X[k], X[k-1], w1, X[k]), putX(k, X[k])))
    for i, k in enumerate((0, 2, 4, 6)):
        xs.append(lambda i=i, k=k: (cmul(a, X[k], X[k], w256, tA), putX(8+i, X[k])))
    xs.append(lambda: (cmul(a, X[0], X[0], w256, tA), putX(12, X[0])))
    xs.append(lambda: (cmul(a, X[4], X[4], w256, tA), putX(13, X[4])))
    xs.append(lambda: (cmul(a, X[0], X[0], w256, tA), putX(14, X[0])))
    xs.append(lambda: (cmul(a, X[4], X[4], w256, tA), putX(15, X[4])))
    for i in range(5):
        xs.append(lambda i=i: (cmul(a, X[0], X[0], w256, tA), putX(16+i, X[0])))

    def y0():
        a(f"v_mov_b32 v{Y[0]}, 1.0\nv_mov_b32 v{Y[0]+1}, 0\nv_mov_b32 v{Y[1]}, v{w8}\nv_mov_b32 v{Y[1]+1}, v{w8+1}")
        putY(0, Y[0]); putY(1, Y[1])
    ys.append(y0)
    ys.append(lambda: (cmul(a, Y[2], w8, w8, Y[2]), putY(2, Y[2])))
    ys.append(lambda: (cmul(a, Y[3], Y[2], w8, Y[3]), putY(3, Y[3])))
    ys.append(lambda: cmul(a, w32, Y[2], Y[2], w32))
    for j in range(4, 32):
        ys.append(lambda j=j: (cmul(a, Y[j % 4], Y[j % 4], w32, tB), putY(j, Y[j % 4])))
    while xs or ys:
        if ys: ys.pop(0)()
        if xs: xs.pop(0)()
        if ys and len(ys) > len(xs): ys.pop(0)()
    aad, bad = V(), V()
    a(f"v_and_b32 v{t0}, 15, v0")
    a(f"v_mul_u32_u24 v{t0}, {RS}, v{t0}")
    a(f"v_and_b32 v{t1}, 0x30, v0")
    a(f"v_add_u32 v{t0}, v{t0}, v{t1}")
    a(f"v_lshrrev_b32 v{t1}, 7, v0")
    a(f"v_mul_u32_u24 v{t1}, {CHS}, v{t1}")
    a(f"v_add_u32 v{aad}, v{t0}, v{t1}")
    a(f"v_bfe_u32 v{t1}, v0, 6, 1")
    a(f"v_mul_u32_u24 v{t1}, {16*RS}, v{t1}")
    a(f"v_add_u32 v{bad}, v{aad}, v{t1}")
    q, jc, sa0, sa1, sa2 = V(), V(), V(), V(), V()
    a(f"v_bfe_u32 v{q}, v0, 4, 2")
    a(f"v_bfe_u32 v{jc}, v0, 6, 1")
    a(f"v_and_b32 v{t0}, 15, v0")
    a(f"v_lshl_add_u32 v{jc}, v{jc}, 4, v{t0}")
    a(f"v_lshrrev_b32 v{t1}, 7, v0")
    a(f"v_lshlrev_b32 v{t1}, 11, v{t1}")
    a(f"v_add_u32 v{t1}, {TO}, v{t1}")
    a(f"v_lshlrev_b32 v{sa0}, 3, v{q}")
    a(f"v_lshl_add_u32 v{sa0}, v{jc}, 4, v{sa0}")
    a(f"v_lshlrev_b32 v{t0}, 3, v{jc}")
    a(f"v_add_u32 v{t0}, 512, v{t0}")
    a(f"v_cmp_eq_u32 vcc, 2, v{q}")
    a(f"v_cndmask_b32 v{sa0}, v{sa0}, v{t0}, vcc")
    a(f"v_add_u32 v{sa1}, 4, v{sa0}")
    a(f"v_lshlrev_b32 v{t0}, 2, v{jc}")
    a(f"v_add_u32 v{t0}, 768, v{t0}")
    a(f"v_cmp_eq_u32 vcc, 3, v{q}")
    a(f"v_cndmask_b32 v{sa0}, v{sa0}, v{t0}, vcc")
    a(f"v_add_u32 v{t0}, 128, v{t0}")
    a(f"v_cndmask_b32 v{sa1}, v{sa1}, v{t0}, vcc")
    a(f"v_add_u32 v{sa0}, v{sa0}, v{t1}")
    a(f"v_add_u32 v{sa1}, v{sa1}, v{t1}")
    a(f"v_lshlrev_b32 v{sa2}, 8, v{q}")
    a(f"v_lshl_add_u32 v{sa2}, v{jc}, 1, v{sa2}")
    a(f"v_add_u32 v{sa2}, v{sa2}, v{t1}")
    a("s_waitcnt lgkmcnt(0)\ns_barrier")
    fr = V(96, 4)
    D0, D1 = V(4, 4), V(4, 4)
    lg = Cnt(a, "lgkmcnt", 15)
    done = 0

    def mf(s):
        lg.wait(s)
        b = fr + s * 12
        c0 = "0" if s == 0 else vr(D0, 4)
        c1 = "0" if s == 0 else vr(D1, 4)
        a(f"v_mfma_f32_16x16x32_bf16 {vr(D0,4)}, {vr(b,4)}, {vr(b+8,4)}, {c0}")
        a(f"v_mfma_f32_16x16x32_bf16 {vr(D1,4)}, {vr(b+4,4)}, {vr(b+8,4)}, {c1}")
    for s in range(8):
        if s >= 5:
            mf(done); done += 1
        b = fr + s * 12
        a(f"ds_read_b128 {vr(b,4)}, v{aad} offset:{s*64}"); lg.issue(s)
        a(f"ds_read_b128 {vr(b+4,4)}, v{aad} offset:{16*RS+s*64}"); lg.issue(s)
        a(f"ds_read_b128 {vr(b+8,4)}, v{bad} offset:{YO+s*64}"); lg.issue(s)
    while done < 8:
        mf(done); done += 1
    a(f"v_cvt_pk_bf16_f32 v{pk[0]}, v{D0}, v{D0+1}")
    a(f"v_cvt_pk_bf16_f32 v{pk[1]}, v{D0+2}, v{D0+3}")
    a(f"v_cvt_pk_bf16_f32 v{pk[2]}, v{D1}, v{D1+1}")
    a(f"v_cvt_pk_bf16_f32 v{pk[3]}, v{D1+2}, v{D1+3}")
    a(f"ds_write_b32 v{sa0}, v{pk[0]}")
    a(f"ds_write_b32 v{sa1}, v{pk[1]}")
    a(f"ds_write_b16 v{sa2}, v{pk[2]} offset:1024")
    a(f"ds_write_b16_d16_hi v{sa2}, v{pk[2]} offset:{1024+64}")
    a(f"ds_write_b16 v{sa2}, v{pk[3]} offset:{1024+128}")
    a(f"ds_write_b16_d16_hi v{sa2}, v{pk[3]} offset:{1024+192}")
    a(f"s_lshl_b32 s3, s2, 13")
    a(f"s_add_u32 s3, s3, {KR}")
    srd(a, 8, "s4", "s5", 8192, "s3")
    a(f"v_lshlrev_b32 v{off}, 4, v0")
    a("s_waitcnt lgkmcnt(0)\ns_barrier")
    o0 = fr
    g0 = fr + 8
    for ch in range(2):
        for i in range(8):
            if ch == 1 and i == 7: a("s_waitcnt lgkmcnt(8)")
            a(f"ds_read_u16 v{g0+ch*8+i}, v{gad+i} offset:{ch*2048}")
    a("s_waitcnt lgkmcnt(0)")
    for ch in range(2):
        for i in range(0, 8, 2):
            a(f"v_lshl_or_b32 v{o0+ch*4+i//2}, v{g0+ch*8+i+1}, 16, v{g0+ch*8+i}")
    a("s_movk_i32 s3, 4096")
    a(f"buffer_store_dwordx4 {vr(o0,4)}, v{off}, s[8:11], 0 offen")
    a(f"buffer_store_dwordx4 {vr(o0+4,4)}, v{off}, s[8:11], s3 offen")
    a("s_endpgm")
    hi = max(hi, V.hi)

    a.label("P_X")
    V = Alloc(1)
    XS = 1088
    a("s_load_dwordx2 s[6:7], s[0:1], 0")
    a("s_sub_u32 s3, s2, 256")
    wv, lane16 = V(), V()
    a(f"v_lshrrev_b32 v{wv}, 6, v0")
    a(f"v_readfirstlane_b32 s20, v{wv}")
    a(f"v_and_b32 v{lane16}, 63, v0")
    a(f"v_lshlrev_b32 v{lane16}, 4, v{lane16}")
    a("s_lshl_b32 s21, s3, 15")
    a("s_lshl_b32 s22, s20, 13")
    a("s_add_u32 s21, s21, s22")
    a(f"s_mul_i32 s23, s20, {8*XS}")
    a("s_waitcnt lgkmcnt(0)")
    srd(a, 8, "s6", "s7", 2097152)
    for i in range(8):
        a(f"s_add_u32 m0, s23, {i*XS}")
        a(f"buffer_load_dwordx4 v{lane16}, s[8:11], s21 offen lds")
        a(f"s_add_u32 s21, s21, 1024")
    srd(a, 12, "s4", "s5", 2097152, XT0)
    srd(a, 16, "s4", "s5", 0x20000, ST0)
    sad, t0, t1, tad, oad = V(), V(), V(), V(), V()
    a(f"v_lshrrev_b32 v{t0}, 3, v0")
    a(f"v_mul_u32_u24 v{sad}, {XS}, v{t0}")
    a(f"v_and_b32 v{t1}, 7, v0")
    a(f"v_lshl_add_u32 v{sad}, v{t1}, 4, v{sad}")
    so = V()
    a(f"s_lshl_b32 s24, s3, 7")
    a(f"v_lshl_add_u32 v{so}, v{t0}, 2, s24")
    a(f"v_cmp_eq_u32 vcc, 0, v{t1}")
    a(f"v_mov_b32 v{t0}, 0x7ffffff0")
    a(f"v_cndmask_b32 v{so}, v{t0}, v{so}, vcc")
    a(f"v_bfe_u32 v{t0}, v0, 4, 2")
    a(f"v_bfe_u32 v{t1}, v0, 2, 2")
    a(f"v_lshl_add_u32 v{t0}, v{t0}, 3, v{t1}")
    a(f"v_mul_u32_u24 v{tad}, {XS}, v{t0}")
    a(f"v_and_b32 v{t1}, 3, v0")
    a(f"v_lshl_add_u32 v{tad}, v{t1}, 3, v{tad}")
    a(f"v_lshl_add_u32 v{tad}, v{wv}, 8, v{tad}")
    a(f"v_and_b32 v{t0}, 15, v0")
    a(f"v_lshl_add_u32 v{t0}, v{wv}, 7, v{t0}")
    a(f"v_lshlrev_b32 v{oad}, 12, v{t0}")
    a(f"v_and_b32 v{t1}, 0x30, v0")
    a(f"v_add_u32 v{oad}, v{oad}, v{t1}")
    a(f"s_lshl_b32 s24, s3, 6")
    a(f"v_add_u32 v{oad}, s24, v{oad}")
    a("s_waitcnt vmcnt(0)\ns_barrier")
    d = V(32, 4)
    for i in range(8):
        a(f"ds_read_b64_tr_b16 {vr(d+4*i,2)}, v{tad} offset:{i*32}")
        if i == 7: a("s_waitcnt lgkmcnt(8)")
        a(f"ds_read_b64_tr_b16 {vr(d+4*i+2,2)}, v{tad} offset:{i*32+4*XS}")
    e = V(32, 4)
    a("s_mov_b32 s25, 0")
    a("s_waitcnt lgkmcnt(0)")
    for i in range(8):
        a(f"ds_read_b128 {vr(e+4*i,4)}, v{sad} offset:{i*128}")
    for i in range(8):
        a(f"buffer_store_dwordx4 {vr(d+4*i,4)}, v{oad}, s[12:15], s25 offen")
        a(f"s_add_u32 s25, s25, 65536")
    sm, sq, one = V(), V(), V()
    a(f"v_mov_b32 v{sm}, 0\nv_mov_b32 v{sq}, 0\nv_mov_b32 v{one}, {ONES_BF16}")
    a("s_waitcnt lgkmcnt(0)")
    for i in range(32):
        a(f"v_dot2c_f32_bf16 v{sm}, v{e+i}, v{one}")
        a(f"v_dot2c_f32_bf16 v{sq}, v{e+i}, v{e+i}")
    for m in ("quad_perm:[1,0,3,2]", "quad_perm:[2,3,0,1]", "row_half_mirror"):
        a(f"v_add_f32_dpp v{sm}, v{sm}, v{sm} {m} row_mask:0xf bank_mask:0xf")
        a(f"v_add_f32_dpp v{sq}, v{sq}, v{sq} {m} row_mask:0xf bank_mask:0xf")
    a(f"v_mov_b32 v{one}, 0")
    a("s_movk_i32 s25, 0x2000")
    a(f"s_mov_b32 s26, {ST2-ST0}")
    a(f"s_mov_b32 s27, {ST2-ST0+0x2000}")
    a(f"buffer_store_dword v{sm}, v{so}, s[16:19], 0 offen")
    a(f"buffer_store_dword v{sq}, v{so}, s[16:19], s25 offen")
    a(f"buffer_store_dword v{one}, v{so}, s[16:19], s26 offen")
    a(f"buffer_store_dword v{one}, v{so}, s[16:19], s27 offen")
    a("s_endpgm")
    hi = max(hi, V.hi)

    a.label("P_GU")
    V = Alloc(1)
    a("s_load_dwordx4 s[8:11], s[0:1], 64")
    a("s_sub_u32 s3, s2, 320")
    t0, t1, goff, wad, wv = V(), V(), V(), V(), V()
    a(f"v_lshrrev_b32 v{t0}, 1, v0")
    a(f"v_mul_u32_u24 v{goff}, 2752, v{t0}")
    a(f"v_and_b32 v{t1}, 1, v0")
    a(f"v_lshl_add_u32 v{goff}, v{t1}, 4, v{goff}")
    a(f"s_lshl_b32 s20, s3, 5")
    a(f"v_add_u32 v{goff}, s20, v{goff}")
    a(f"v_lshlrev_b32 v{wad}, 5, v{t0}")
    a(f"v_lshl_add_u32 v{wad}, v{t1}, 14, v{wad}")
    a("s_waitcnt lgkmcnt(0)")
    srd(a, 12, "s8", "s9", 512*2752)
    srd(a, 16, "s10", "s11", 512*2752)
    G = V(32, 4)
    a("s_mov_b32 s21, 0")
    for it in range(4):
        a(f"buffer_load_dwordx4 {vr(G+8*it,4)}, v{goff}, s[12:15], s21 offen")
        a(f"buffer_load_dwordx4 {vr(G+8*it+4,4)}, v{goff}, s[16:19], s21 offen")
        a(f"s_add_u32 s21, s21, {128*2752}")
    tad, oad = V(), V()
    a(f"v_lshrrev_b32 v{wv}, 6, v0")
    a(f"v_bfe_u32 v{t0}, v0, 4, 2")
    a(f"v_bfe_u32 v{t1}, v0, 2, 2")
    a(f"v_lshl_add_u32 v{t0}, v{t0}, 3, v{t1}")
    a(f"v_lshlrev_b32 v{tad}, 5, v{t0}")
    a(f"v_and_b32 v{t1}, 3, v0")
    a(f"v_lshl_add_u32 v{tad}, v{t1}, 3, v{tad}")
    a(f"v_lshl_add_u32 v{tad}, v{wv}, 13, v{tad}")
    a(f"v_and_b32 v{t0}, 63, v0")
    a(f"v_lshlrev_b32 v{oad}, 4, v{t0}")
    a(f"v_lshl_add_u32 v{oad}, v{wv}, 13, v{oad}")
    a(f"s_lshl_b32 s20, s3, 15")
    a(f"s_add_u32 s20, s20, {WGU}")
    srd(a, 24, "s4", "s5", 32768, "s20")
    a(f"s_lshl_b32 s20, s3, 8")
    a(f"s_add_u32 s20, s20, {CS}")
    srd(a, 28, "s4", "s5", 256, "s20")
    for it in range(4):
        a(f"s_waitcnt vmcnt({6-2*it})")
        a(f"v_add_u32 v{t0}, {it*4096}, v{wad}")
        for qq in range(4):
            a(f"ds_write2_b32 v{t0}, v{G+8*it+qq}, v{G+8*it+4+qq} offset0:{2*qq} offset1:{2*qq+1}")
        a("s_waitcnt lgkmcnt(4)") if it >= 2 else None
    a("s_waitcnt lgkmcnt(0)\ns_barrier")
    for i in range(8):
        a(f"ds_read_b64_tr_b16 {vr(G+4*i,2)}, v{tad} offset:{i*1024}")
        if i == 7: a("s_waitcnt lgkmcnt(8)")
        a(f"ds_read_b64_tr_b16 {vr(G+4*i+2,2)}, v{tad} offset:{i*1024+128}")
    sm, sm2, one = V(), V(), V()
    a(f"v_mov_b32 v{sm}, 0\nv_mov_b32 v{one}, {ONES_BF16}")
    a("s_movk_i32 s21, 4096")
    a("s_waitcnt lgkmcnt(0)")
    for i in range(8):
        so = "0" if i < 4 else "s21"
        a(f"buffer_store_dwordx4 {vr(G+4*i,4)}, v{oad}, s[24:27], {so} offen offset:{(i%4)*1024}")
    for i in range(32):
        a(f"v_dot2c_f32_bf16 v{sm}, v{G+i}, v{one}")
    a(f"v_mov_b32 v{sm2}, v{sm}")
    a(f"v_permlane32_swap_b32 v{sm}, v{sm2}")
    a(f"v_add_f32 v{sm}, v{sm}, v{sm2}")
    a(f"v_mov_b32 v{sm2}, v{sm}")
    a(f"v_permlane16_swap_b32 v{sm}, v{sm2}")
    a(f"v_add_f32 v{sm}, v{sm}, v{sm2}")
    a(f"v_and_b32 v{t0}, 15, v0")
    a(f"v_lshlrev_b32 v{t0}, 2, v{t0}")
    a(f"v_lshl_add_u32 v{t0}, v{wv}, 6, v{t0}")
    a(f"buffer_store_dword v{sm}, v{t0}, s[28:31], 0 offen")
    a("s_endpgm")
    hi = max(hi, V.hi)

    a.label("P_D")
    V = Alloc(1)
    a("s_load_dwordx2 s[6:7], s[0:1], 80")
    a("s_sub_u32 s3, s2, 406")
    wv, lane16, t0, t1, tad, oad = V(), V(), V(), V(), V(), V()
    a(f"v_lshrrev_b32 v{wv}, 6, v0")
    a(f"v_readfirstlane_b32 s20, v{wv}")
    a(f"v_and_b32 v{lane16}, 63, v0")
    a(f"v_lshlrev_b32 v{lane16}, 4, v{lane16}")
    a("s_lshl_b32 s21, s3, 14")
    a("s_lshl_b32 s22, s20, 12")
    a("s_add_u32 s21, s21, s22")
    a(f"s_mul_i32 s23, s20, {4*XS}")
    a("s_waitcnt lgkmcnt(0)")
    srd(a, 8, "s6", "s7", 1376*1024)
    for i in range(4):
        a(f"s_add_u32 m0, s23, {i*XS}")
        a(f"buffer_load_dwordx4 v{lane16}, s[8:11], s21 offen lds")
        a(f"s_add_u32 s21, s21, 1024")
    a(f"s_lshl_b32 s20, s3, 14")
    a(f"s_add_u32 s20, s20, {WD}")
    srd(a, 12, "s4", "s5", 16384, "s20")
    a(f"v_bfe_u32 v{t0}, v0, 7, 1")
    a(f"v_bfe_u32 v{t1}, v0, 2, 2")
    a(f"v_lshl_add_u32 v{t0}, v{t0}, 3, v{t1}")
    a(f"v_mul_u32_u24 v{tad}, {XS}, v{t0}")
    a(f"v_and_b32 v{t1}, 3, v0")
    a(f"v_lshl_add_u32 v{tad}, v{t1}, 3, v{tad}")
    a(f"v_bfe_u32 v{t1}, v0, 4, 2")
    a(f"v_lshl_add_u32 v{tad}, v{t1}, 5, v{tad}")
    a(f"v_bfe_u32 v{t1}, v0, 6, 1")
    a(f"v_lshl_add_u32 v{tad}, v{t1}, 9, v{tad}")
    a(f"v_lshl_add_u32 v{oad}, v{wv}, 12, v{lane16}")
    a("s_waitcnt vmcnt(0)\ns_barrier")
    d = V(16, 4)
    for i in range(4):
        a(f"ds_read_b64_tr_b16 {vr(d+4*i,2)}, v{tad} offset:{i*128}")
        a(f"ds_read_b64_tr_b16 {vr(d+4*i+2,2)}, v{tad} offset:{i*128+4*XS}")
    for i in range(4):
        a(f"s_waitcnt lgkmcnt({6-2*i})")
        a(f"buffer_store_dwordx4 {vr(d+4*i,4)}, v{oad}, s[12:15], 0 offen offset:{i*1024}")
    a("s_endpgm")
    hi = max(hi, V.hi)
    return a.lines(), hi, 0, 60416


def ln_finalize_pair(a, S, Q, M, RS_, t, inv_n_s):
    a(f"v_pk_mul_f32 {vr(S,2)}, {vr(S,2)}, {sr(inv_n_s,2)}")
    a(f"v_pk_mul_f32 {vr(Q,2)}, {vr(Q,2)}, {sr(inv_n_s,2)}")
    a(f"v_pk_fma_f32 {vr(Q,2)}, {vr(S,2)}, {vr(S,2)}, {vr(Q,2)} neg_lo:[1,0,0] neg_hi:[1,0,0]")
    a(f"v_cvt_pk_bf16_f32 v{t}, v{S}, v{S+1}")
    a(f"v_max_f32 v{Q}, 0, v{Q}")
    a(f"v_max_f32 v{Q+1}, 0, v{Q+1}")
    a(f"v_lshlrev_b32 v{M}, 16, v{t}")
    a(f"v_and_b32 v{M+1}, 0xffff0000, v{t}")
    a(f"v_cvt_pk_bf16_f32 v{t}, v{Q}, v{Q+1}")
    a(f"v_lshlrev_b32 v{Q}, 16, v{t}")
    a(f"v_and_b32 v{Q+1}, 0xffff0000, v{t}")
    a(f"v_add_f32 v{Q}, {f32bits(1e-5)}, v{Q}")
    a(f"v_add_f32 v{Q+1}, {f32bits(1e-5)}, v{Q+1}")
    a(f"v_cvt_pk_bf16_f32 v{t}, v{Q}, v{Q+1}")
    a(f"v_lshlrev_b32 v{Q}, 16, v{t}")
    a(f"v_and_b32 v{Q+1}, 0xffff0000, v{t}")
    a(f"v_sqrt_f32 v{Q}, v{Q}")
    a(f"v_sqrt_f32 v{Q+1}, v{Q+1}")
    a(f"v_cvt_pk_bf16_f32 v{t}, v{Q}, v{Q+1}")
    a(f"v_lshlrev_b32 v{RS_}, 16, v{t}")
    a(f"v_and_b32 v{RS_+1}, 0xffff0000, v{t}")


def k_conv():
    a = Asm()
    KC, KCH = 4160, 16640
    UO, UCH = 33280, 4608
    YP = 42496
    LDS = YP + 4 * 8192
    a.label("C_BODY")
    a("s_cmp_ge_u32 s2, 256\ns_cbranch_scc1 C_END")
    a("s_load_dwordx2 s[4:5], s[0:1], 104")
    a("s_load_dwordx2 s[6:7], s[0:1], 48")
    V = Alloc(1)
    o16, o32 = V(), V()
    t0, t1, t2 = V(), V(), V()
    aad, bad, yad = V(), V(), V()
    XF = V(16, 2)
    UF = V(16, 2)
    UP = V(8, 4)
    mk = V.mark()
    a(f"v_lshlrev_b32 v{o16}, 4, v0")
    a(f"v_lshlrev_b32 v{o32}, 5, v0")
    a("s_lshl_b32 s3, s2, 13")
    a("s_add_u32 s40, s40, s3")
    a("s_add_u32 s42, s42, s3")
    a(f"s_add_u32 s43, s3, {KR}")
    a(f"s_add_u32 s44, s3, {KR+4096}")
    a("s_lshl_b32 s45, s2, 2")
    a("s_movk_i32 s46, 0x1000")
    a("s_movk_i32 s47, 0x2000")
    a("s_waitcnt lgkmcnt(0)")
    a("s_load_dword s48, s[6:7], s45")
    srd(a, 8, "s4", "s5", 16384, "s41")
    srd(a, 12, "s4", "s5", 8192, "s40")
    S, Q = V(8, 4), V(8, 4)
    XR = V(8, 4)
    vm = Cnt(a, "vmcnt", 63)
    a(f"buffer_load_dwordx4 {vr(S,4)}, v{o32}, s[8:11], 0 offen"); vm.issue("st")
    a(f"buffer_load_dwordx4 {vr(S+4,4)}, v{o32}, s[8:11], 0 offen offset:16"); vm.issue("st")
    a(f"buffer_load_dwordx4 {vr(Q,4)}, v{o32}, s[8:11], s47 offen"); vm.issue("st")
    a(f"buffer_load_dwordx4 {vr(Q+4,4)}, v{o32}, s[8:11], s47 offen offset:16"); vm.issue("st")
    a(f"buffer_load_dwordx4 {vr(XR,4)}, v{o16}, s[12:15], 0 offen"); vm.issue("x")
    a(f"buffer_load_dwordx4 {vr(XR+4,4)}, v{o16}, s[12:15], s46 offen"); vm.issue("x")
    srd(a, 16, "s4", "s5", 4096, "s43")
    srd(a, 20, "s4", "s5", 4096, "s44")
    KA = V(24, 4)
    for ch in range(2):
        for p in range(3):
            a(f"buffer_load_dwordx4 {vr(KA+ch*12+p*4,4)}, v{o16}, s[{16+4*ch}:{19+4*ch}], 0 offen offset:{4*p}")
            vm.issue(f"k{ch}")
    srd(a, 24, "s4", "s5", 8192, "s42")
    a(f"v_add_u32 v{o32}, {YP}, v{o32}")
    Z = V(4, 4)
    for i in range(4):
        a(f"v_mov_b32 v{Z+i}, 0")
    a(f"v_bfe_u32 v{t0}, v0, 5, 1")
    a(f"v_mul_u32_u24 v{t0}, {UCH}, v{t0}")
    a(f"v_and_b32 v{t1}, 31, v0")
    a(f"v_lshl_add_u32 v{t0}, v{t1}, 4, v{t0}")
    a(f"v_add_u32 v{t0}, {UO}, v{t0}")
    a(f"v_bfe_u32 v{t1}, v0, 1, 3")
    a(f"v_mul_u32_u24 v{t1}, {KC}, v{t1}")
    a(f"v_and_b32 v{t2}, 1, v0")
    a(f"v_lshl_add_u32 v{t1}, v{t2}, 4, v{t1}")
    a(f"v_add_u32 v{t1}, 4096, v{t1}")
    a(f"v_cmp_gt_u32 vcc, 64, v0")
    a(f"v_cndmask_b32 v{t0}, v{t1}, v{t0}, vcc")
    a(f"ds_write_b128 v{t0}, {vr(Z,4)}")
    a(f"v_and_b32 v{t0}, 3, v0")
    a(f"v_sub_u32 v{t0}, 3, v{t0}")
    a(f"v_mul_u32_u24 v{aad}, {KC}, v{t0}")
    a(f"v_bfe_u32 v{t0}, v0, 2, 2")
    a(f"v_lshlrev_b32 v{t0}, 3, v{t0}")
    a(f"v_sub_u32 v{aad}, v{aad}, v{t0}")
    a(f"v_and_b32 v{t1}, 0x30, v0")
    a(f"v_add_u32 v{aad}, v{aad}, v{t1}")
    a(f"v_bfe_u32 v{t0}, v0, 6, 1")
    a(f"v_lshlrev_b32 v{t0}, 8, v{t0}")
    a(f"v_sub_u32 v{aad}, v{aad}, v{t0}")
    a(f"v_lshrrev_b32 v{t2}, 7, v0")
    a(f"v_mul_u32_u24 v{bad}, {KCH}, v{t2}")
    a(f"v_add_u32 v{aad}, v{aad}, v{bad}")
    a(f"v_add_u32 v{aad}, {4056-3584-192}, v{aad}")
    a(f"v_mul_u32_u24 v{bad}, {UCH}, v{t2}")
    a(f"v_sub_u32 v{bad}, v{bad}, v{t0}")
    a(f"v_add_u32 v{bad}, v{bad}, v{t1}")
    a(f"v_and_b32 v{t0}, 15, v0")
    a(f"v_lshl_add_u32 v{bad}, v{t0}, 5, v{bad}")
    a(f"v_add_u32 v{bad}, {UO+480-192}, v{bad}")
    a(f"v_lshrrev_b32 v{t2}, 6, v0")
    a(f"v_lshlrev_b32 v{yad}, 13, v{t2}")
    a(f"v_lshl_add_u32 v{yad}, v{t0}, 6, v{yad}")
    a(f"v_add_u32 v{yad}, v{yad}, v{t1}")
    a(f"s_mov_b32 s30, {f32bits(1/512)}\ns_mov_b32 s31, {f32bits(1/512)}")
    M, R = V(8, 2), V(8, 2)
    vm.wait("st")
    for p in range(4):
        ln_finalize_pair(a, S+2*p, Q+2*p, M+2*p, R+2*p, [t0, t1, t2, t0][p], 30)
    for i in range(8):
        a(f"v_rcp_f32 v{R+i}, v{R+i}")
    vm.wait("x")
    a("s_waitcnt lgkmcnt(0)")
    a("s_lshl_b32 s50, s48, 16\ns_mov_b32 s51, s50\ns_and_b32 s52, s48, 0xffff0000\ns_mov_b32 s53, s52")
    for ch in range(2):
        for p in range(4):
            x = XF + ch*8 + 2*p
            u = UF + ch*8 + 2*p
            tt = [t0, t1][p & 1]
            a(f"v_lshlrev_b32 v{x}, 16, v{XR+ch*4+p}")
            a(f"v_and_b32 v{x+1}, 0xffff0000, v{XR+ch*4+p}")
            a(f"v_pk_add_f32 {vr(u,2)}, {vr(x,2)}, {vr(M+2*p,2)} neg_lo:[0,1] neg_hi:[0,1]")
            a(f"v_cvt_pk_bf16_f32 v{tt}, v{u}, v{u+1}")
            a(f"v_lshlrev_b32 v{u}, 16, v{tt}")
            a(f"v_and_b32 v{u+1}, 0xffff0000, v{tt}")
            a(f"v_pk_mul_f32 {vr(u,2)}, {vr(u,2)}, {vr(R+2*p,2)}")
            a(f"v_cvt_pk_bf16_f32 v{UP+ch*4+p}, v{u}, v{u+1}")
        a(f"ds_write_b128 v{o16}, {vr(UP+ch*4,4)} offset:{UO+ch*UCH+512}")
    O1, O3 = V(4, 4), V(4, 4)
    for ch in range(2):
        vm.wait(f"k{ch}")
        A_, B_, C_ = KA+ch*12, KA+ch*12+4, KA+ch*12+8
        a(f"ds_write_b128 v{o16}, {vr(A_,4)} offset:{ch*KCH}")
        a(f"ds_write_b128 v{o16}, {vr(B_,4)} offset:{ch*KCH+2*KC}")
        o1, o3 = (O1, O3) if ch == 0 else (S, Q)
        for i in range(4):
            a(f"v_alignbit_b32 v{o1+i}, v{B_+i}, v{A_+i}, 16")
        a(f"ds_write_b128 v{o16}, {vr(o1,4)} offset:{ch*KCH+KC}")
        for i in range(4):
            a(f"v_alignbit_b32 v{o3+i}, v{C_+i}, v{B_+i}, 16")
        a(f"ds_write_b128 v{o16}, {vr(o3,4)} offset:{ch*KCH+3*KC}")
    for ch in range(2):
        for p in range(4):
            u = UF + ch*8 + 2*p
            tt = [t0, t1][p & 1]
            a(f"v_lshlrev_b32 v{u}, 16, v{UP+ch*4+p}")
            a(f"v_and_b32 v{u+1}, 0xffff0000, v{UP+ch*4+p}")
            a(f"v_pk_mul_f32 {vr(u,2)}, {vr(u,2)}, {sr(50+2*ch,2)}")
            a(f"v_cvt_pk_bf16_f32 v{tt}, v{u}, v{u+1}")
            a(f"v_lshlrev_b32 v{u}, 16, v{tt}")
            a(f"v_and_b32 v{u+1}, 0xffff0000, v{tt}")
    a("s_waitcnt lgkmcnt(0)\ns_barrier")
    V.release(mk)
    ACC = V(32, 4)
    FB = [V(64, 4), V(64, 4)]
    lg = Cnt(a, "lgkmcnt", 15)

    def reads(rp):
        f = FB[rp & 1]
        out = []
        for i in range(8):
            def rb(i=i):
                lg.room(1)
                a(f"ds_read_b128 {vr(f+32+4*i,4)}, v{bad} offset:{512*i+64*(3-rp)}"); lg.issue((rp, i))
            def ra0(i=i):
                lg.room(1)
                a(f"ds_read_b64 {vr(f+4*i,2)}, v{aad} offset:{512*(7-i)+64*(3-rp)}"); lg.issue((rp, i))
            def ra1(i=i):
                lg.room(1)
                a(f"ds_read_b64 {vr(f+4*i+2,2)}, v{aad} offset:{512*(7-i)+64*(3-rp)+8}"); lg.issue((rp, i))
            out += [rb, ra0, ra1]
        return out
    allr = [(rp, k // 3, fn) for rp in range(4) for k, fn in enumerate(reads(rp))]
    ptr = 0
    while ptr < 12:
        allr[ptr][2](); ptr += 1
    for rp in range(4):
        f = FB[rp & 1]
        pairs = sorted([(q, m) for q in range(8) for m in range(8) if q + m <= 7], key=lambda x: (max(x), x[0] + x[1]))
        seen = set()
        for (q, m) in pairs:
            lv = max(q, m)
            while ptr < len(allr) and allr[ptr][:2] <= (rp, lv):
                allr[ptr][2](); ptr += 1
            lg.wait((rp, lv))
            c = q + m
            cc = "0" if (rp == 0 and c not in seen) else vr(ACC+4*c, 4)
            seen.add(c)
            a(f"v_mfma_f32_16x16x32_bf16 {vr(ACC+4*c,4)}, {vr(f+4*q,4)}, {vr(f+32+4*m,4)}, {cc}")
            if ptr < len(allr) and allr[ptr][0] <= rp + 1:
                allr[ptr][2](); ptr += 1
    for c in range(8):
        a(f"ds_write_b128 v{yad}, {vr(ACC+4*c,4)} offset:{YP+1024*c}")
    a("s_waitcnt lgkmcnt(0)\ns_barrier")
    Y = FB[0]
    for ch in range(2):
        for h in range(2):
            for k in range(2):
                a(f"ds_read_b128 {vr(Y+ch*16+h*8+k*4,4)}, v{o32} offset:{(2*ch+h)*8192+16*k}")
    for ch in range(2):
        a(f"s_waitcnt lgkmcnt({4-4*ch})")
        for p in range(4):
            y = Y + ch*16 + 2*p
            u = UF + ch*8 + 2*p
            x = XF + ch*8 + 2*p
            tt = [t0, t1][p & 1]
            a(f"v_pk_add_f32 {vr(y,2)}, {vr(y,2)}, {vr(y+8,2)}")
            a(f"v_pk_add_f32 {vr(y,2)}, {vr(y,2)}, {vr(u,2)}")
            a(f"v_cvt_pk_bf16_f32 v{tt}, v{y}, v{y+1}")
            a(f"v_lshlrev_b32 v{y}, 16, v{tt}")
            a(f"v_and_b32 v{y+1}, 0xffff0000, v{tt}")
            a(f"v_pk_add_f32 {vr(y,2)}, {vr(y,2)}, {vr(x,2)}")
            a(f"v_cvt_pk_bf16_f32 v{UP+ch*4+p}, v{y}, v{y+1}")
        a(f"buffer_store_dwordx4 {vr(UP+ch*4,4)}, v{o16}, s[24:27], {'0' if ch == 0 else 's46'} offen")
    a.label("C_END")
    a("s_endpgm")
    return a.lines(), V.hi, 0, LDS


def k_g1():
    a = Asm()
    STO = 131072
    LDS = STO + 2048
    a.label("G1_BODY")
    a("s_cmp_ge_u32 s2, 256\ns_cbranch_scc1 G1_END")
    a("s_load_dwordx2 s[4:5], s[0:1], 104")
    V = Alloc(1)
    t0, t1, t2, t3 = V(), V(), V(), V()
    a(f"v_lshrrev_b32 v{t0}, 6, v0")
    a(f"v_readfirstlane_b32 s20, v{t0}")
    a("s_and_b32 s21, s2, 1\ns_lshl_b32 s21, s21, 3\ns_bfe_u32 s22, s2, 0x30003\ns_add_u32 s21, s21, s22")
    a("s_bfe_u32 s22, s2, 0x20001\ns_lshl_b32 s22, s22, 2\ns_lshr_b32 s23, s2, 6\ns_add_u32 s22, s22, s23")
    a("s_lshl_b32 s23, s22, 2\ns_add_u32 s23, s23, s20")
    a("s_mul_i32 s24, s23, 43\ns_add_u32 s25, s24, 43\ns_lshr_b32 s24, s24, 4\ns_lshr_b32 s25, s25, 4")
    a("s_sub_u32 s25, s25, s24")
    xo = V()
    a(f"v_bfe_u32 v{t0}, v0, 4, 2")
    a(f"v_bfe_u32 v{t1}, v0, 7, 1")
    a(f"v_lshl_or_b32 v{t1}, v{t1}, 2, v{t0}")
    a(f"v_bfe_u32 v{t2}, v0, 1, 3")
    a(f"v_xor_b32 v{t1}, v{t1}, v{t2}")
    a(f"v_lshrrev_b32 v{t2}, 4, v0")
    a(f"v_lshlrev_b32 v{xo}, 12, v{t2}")
    a(f"v_lshl_add_u32 v{xo}, v{t1}, 5, v{xo}")
    a(f"v_and_b32 v{t1}, 1, v0")
    a(f"v_lshl_add_u32 v{xo}, v{t1}, 4, v{xo}")
    a("s_lshl_b32 s26, s21, 8")
    a(f"v_add_u32 v{xo}, s26, v{xo}")
    wo = V(4)
    a(f"v_and_b32 v{t0}, 63, v0")
    a(f"v_lshlrev_b32 v{wo}, 4, v{t0}")
    for g in range(1, 4):
        a(f"v_add_u32 v{wo+g}, {4096*g}, v{wo}")
    a("s_lshl_b32 s27, s24, 14")
    a(f"s_add_u32 s27, s27, {WGU}")
    a("s_add_u32 s28, s27, 16384\ns_add_u32 s29, s27, 32768")
    a("s_cmp_eq_u32 s25, 3\ns_cselect_b32 s30, 16384, 0\ns_cselect_b32 s31, 32768, 0\ns_lshl_b32 s32, s25, 7")
    a("s_lshl_b32 s33, s20, 10")
    a("s_waitcnt lgkmcnt(0)")
    srd(a, 8, "s4", "s5", 2097152, "s40")
    srd(a, 44, "s4", "s5", 16384, "s27")
    srd(a, 48, "s4", "s5", 16384, "s28")
    srd(a, 52, "s4", "s5", "s30", "s29")
    vm = Cnt(a, "vmcnt", 63)
    a("s_mov_b32 s34, 0")

    def issue_step(s):
        for mm in (2*s, 2*s+1):
            a(f"s_add_u32 m0, s33, {mm*4096}")
            a(f"buffer_load_dwordx4 v{xo}, s[8:11], s34 offen lds"); vm.issue(("x", s))
            a("s_add_u32 s34, s34, 65536")
        for j in range(3):
            r = (j*16+s)*4
            a(f"buffer_load_dwordx4 a[{r}:{r+3}], v{wo+s//4}, s[{44+4*j}:{47+4*j}], 0 offen offset:{(s%4)*1024}")
            vm.issue(("w", s))
    PRE = 12
    for s in range(PRE):
        issue_step(s)
    a("s_lshl_b32 s27, s24, 15")
    a(f"s_add_u32 s27, s27, {HB}")
    a("s_add_u32 s28, s27, 32768\ns_add_u32 s29, s27, 65536")
    srd(a, 56, "s4", "s5", 32768, "s27")
    srd(a, 60, "s4", "s5", 32768, "s28")
    srd(a, 64, "s4", "s5", "s31", "s29")
    a("s_lshl_b32 s27, s24, 7")
    a(f"s_add_u32 s27, s27, {CS}")
    srd(a, 68, "s4", "s5", "s32", "s27")
    ra = V(8)
    a(f"v_bfe_u32 v{t0}, v0, 4, 2")
    a(f"v_bfe_u32 v{t1}, v0, 2, 2")
    a(f"v_lshl_add_u32 v{t2}, v{t0}, 3, v{t1}")
    a(f"v_lshlrev_b32 v{t2}, 8, v{t2}")
    a(f"v_and_b32 v{t3}, 3, v0")
    a(f"v_lshl_add_u32 v{t2}, v{t3}, 3, v{t2}")
    a(f"v_and_b32 v{t0}, 1, v{t0}")
    a(f"v_lshl_or_b32 v{t1}, v{t0}, 2, v{t1}")
    a("s_lshl_b32 s35, s20, 1")
    for i in range(8):
        a(f"s_add_u32 s36, s35, {i}\ns_and_b32 s36, s36, 7")
        a(f"v_xor_b32 v{t0}, s36, v{t1}")
        a(f"v_lshl_add_u32 v{ra+i}, v{t0}, 5, v{t2}")
    ACC = V(96, 4)
    XF = [V(32, 4), V(32, 4)]
    ST = V(4, 2)
    one = V()
    for i in range(4):
        a(f"v_mov_b32 v{ST+i}, 0")
    a(f"v_mov_b32 v{one}, {ONES_BF16}")
    lg = Cnt(a, "lgkmcnt", 15)

    def xreads(s):
        out = []
        for i in range(8):
            for h in range(2):
                def f(i=i, h=h):
                    a(f"ds_read_b64_tr_b16 {vr(XF[s&1]+4*i+2*h,2)}, v{ra+i} offset:{(s%8)*8192+h*1024}")
                    lg.issue((s, i))
                out.append(f)
        return out
    CSR = V(24, 4)
    vm.wait(("x", 0))
    a("s_barrier")
    for f in xreads(0):
        f()
    for s in range(16):
        fill = []
        if s < 15:
            vm.wait(("x", s+1))
            a("s_barrier")
            if s + 1 == 8:
                for i in range(8):
                    a(f"v_add_u32 v{ra+i}, 0x10000, v{ra+i}")
            fill += xreads(s+1)
        if s + PRE < 16:
            issue_step(s + PRE)
        if s == 4:
            a(f"v_and_b32 v{t0}, 0x30, v0")
            for j in range(3):
                for h in range(2):
                    a(f"buffer_load_dwordx4 {vr(CSR+8*j+4*h,4)}, v{t0}, s[68:71], 0 offen offset:{128*j+64*h}")
                    vm.issue("cs")
        vm.wait(("w", s))
        x = XF[s & 1]
        dots = []
        for i in range(2):
            for k in range(4):
                dots.append(f"v_dot2c_f32_bf16 v{ST+i}, v{x+4*i+k}, v{one}")
                dots.append(f"v_dot2c_f32_bf16 v{ST+2+i}, v{x+4*i+k}, v{x+4*i+k}")
        n = 0
        for i in range(8):
            lg.wait((s, i))
            for j in range(3):
                r = (j*16+s)*4
                c = ACC + (i*3+j)*4
                a(f"v_mfma_f32_16x16x32_bf16 {vr(c,4)}, a[{r}:{r+3}], {vr(x+4*i,4)}, {'0' if s == 0 else vr(c,4)}")
                n += 1
                if fill:
                    fill.pop(0)()
                if n > 6 and dots and (not fill or n % 3 == 0):
                    a(dots.pop(0))
                    if not fill and dots:
                        a(dots.pop(0))
        for dd in dots:
            a(dd)
    T = XF[0]
    for i in range(4):
        a(f"v_mov_b32 v{T+i}, v{ST+i}")
    for i in range(4):
        a(f"v_permlane32_swap_b32 v{ST+i}, v{T+i}")
    for i in range(4):
        a(f"v_add_f32 v{ST+i}, v{ST+i}, v{T+i}")
    for i in range(4):
        a(f"v_mov_b32 v{T+i}, v{ST+i}")
    for i in range(4):
        a(f"v_permlane16_swap_b32 v{ST+i}, v{T+i}")
    for i in range(4):
        a(f"v_add_f32 v{ST+i}, v{ST+i}, v{T+i}")
    a(f"s_mov_b32 s36, {f32bits(1/512)}\ns_mov_b32 s37, {f32bits(1/512)}")
    M, S = T+4, T+6
    ln_finalize_pair(a, ST, ST+2, M, S, t0, 36)
    c0 = -2*math.sqrt(2/math.pi)*LOG2E
    c1 = c0*0.044715
    O = T+8
    for i in range(2):
        a(f"v_rcp_f32 v{t1+i}, v{S+i}")
    for i in range(2):
        o = O + 4*i
        a(f"v_sub_f32 v{o}, 0, v{M+i}")
        a(f"v_mul_f32 v{o+3}, v{S+i}, v{S+i}")
        a(f"v_mul_f32 v{o+1}, {f32bits(c0)}, v{t1+i}")
        a(f"v_mul_f32 v{o+2}, v{t1+i}, v{t1+i}")
        a(f"v_mul_f32 v{o+2}, v{o+2}, v{t1+i}")
        a(f"v_mul_f32 v{o+2}, {f32bits(c1)}, v{o+2}")
    a(f"v_and_b32 v{t0}, 15, v0")
    a(f"v_lshlrev_b32 v{t0}, 4, v{t0}")
    a(f"s_lshl_b32 s36, s20, 9")
    a(f"v_add_u32 v{t3}, s36, v{t0}")
    a(f"v_add_u32 v{t3}, {STO}, v{t3}")
    a(f"ds_write_b128 v{t3}, {vr(O,4)}")
    a(f"ds_write_b128 v{t3}, {vr(O+4,4)} offset:256")
    vm.wait("cs")
    for j in range(3):
        a(f"v_pk_add_f32 {vr(CSR+8*j,2)}, {vr(CSR+8*j,2)}, {vr(CSR+8*j+4,2)}")
        a(f"v_pk_add_f32 {vr(CSR+8*j+2,2)}, {vr(CSR+8*j+2,2)}, {vr(CSR+8*j+6,2)}")
    for i in range(8):
        a(f"s_add_u32 s36, s35, {i}\ns_and_b32 s36, s36, 7\ns_lshl_b32 s36, s36, 8\ns_add_u32 s36, s36, {STO}")
        a(f"v_add_u32 v{ra+i}, s36, v{t0}")
    ho = [wo, wo+1]
    a(f"v_bfe_u32 v{t1}, v0, 4, 2")
    a(f"v_add_u32 v{t1}, s35, v{t1}")
    a("s_lshl_b32 s36, s21, 11")
    for g in range(2):
        a(f"v_add_u32 v{t2}, {4*g}, v{t1}")
        a(f"v_and_b32 v{t2}, 7, v{t2}")
        a(f"v_lshl_add_u32 v{ho[g]}, v{t2}, 8, v{t0}")
        a(f"v_add_u32 v{ho[g]}, s36, v{ho[g]}")
    a("s_waitcnt lgkmcnt(0)\ns_barrier")
    KC_ = XF[1]
    for i in range(8):
        a(f"ds_read_b128 {vr(KC_+4*i,4)}, v{ra+i}")
    HP = T
    tp = [T+24, T+26, T+28, T+30]
    for g in range(2):
        if g == 0:
            a("s_waitcnt lgkmcnt(4)")
        else:
            a("s_waitcnt lgkmcnt(0)")
        for j in range(3):
            cs = CSR + 8*j
            for i2 in range(0, 4, 2):
                seqs = []
                for u in range(2):
                    i = 4*g + i2 + u
                    c = ACC + (i*3+j)*4
                    k = KC_ + 4*i
                    ta, tb = tp[2*u], tp[2*u+1]
                    G, U = c, c+2
                    seqs.append([
                        f"v_pk_fma_f32 {vr(G,2)}, {vr(cs,2)}, {vr(k,2)}, {vr(G,2)} op_sel:[0,0,0] op_sel_hi:[1,0,1]",
                        f"v_pk_fma_f32 {vr(U,2)}, {vr(cs+2,2)}, {vr(k,2)}, {vr(U,2)} op_sel:[0,0,0] op_sel_hi:[1,0,1]",
                        f"v_pk_mul_f32 {vr(ta,2)}, {vr(G,2)}, {vr(G,2)}",
                        f"v_pk_mul_f32 {vr(U,2)}, {vr(U,2)}, {vr(G,2)}",
                        f"v_pk_fma_f32 {vr(ta,2)}, {vr(ta,2)}, {vr(k+2,2)}, {vr(k,2)} op_sel:[0,0,1] op_sel_hi:[1,0,1]",
                        f"v_pk_mul_f32 {vr(ta,2)}, {vr(ta,2)}, {vr(G,2)}",
                        f"v_exp_f32 v{ta}, v{ta}",
                        f"v_exp_f32 v{ta+1}, v{ta+1}",
                        f"v_pk_fma_f32 {vr(ta,2)}, {vr(ta,2)}, {vr(k+2,2)}, {vr(k+2,2)} op_sel:[0,1,1] op_sel_hi:[1,1,1]",
                        f"v_rcp_f32 v{ta}, v{ta}",
                        f"v_rcp_f32 v{ta+1}, v{ta+1}",
                        f"v_pk_mul_f32 {vr(U,2)}, {vr(U,2)}, {vr(ta,2)}",
                        f"v_cvt_pk_bf16_f32 v{HP+(g*3+j)*4+i2+u}, v{U}, v{U+1}",
                    ])
                for x_, y_ in zip(*seqs):
                    a(x_); a(y_)
            p = HP + (g*3+j)*4
            a(f"v_permlane32_swap_b32 v{p}, v{p+2}")
            a(f"v_permlane32_swap_b32 v{p+1}, v{p+3}")
            a(f"v_permlane16_swap_b32 v{p}, v{p+1}")
            a(f"v_permlane16_swap_b32 v{p+2}, v{p+3}")
            a(f"buffer_store_dwordx4 {vr(p,4)}, v{ho[g]}, s[{56+4*j}:{59+4*j}], 0 offen")
    a.label("G1_END")
    a("s_endpgm")
    return a.lines(), V.hi, 192, LDS


def k_g2():
    a = Asm()
    RED = 0
    TRO = 65536
    TRS = 80
    LDS = TRO + 4 * 32 * TRS
    a.label("G2_BODY")
    a("s_cmp_ge_u32 s2, 256\ns_cbranch_scc1 G2_END")
    a("s_load_dwordx2 s[4:5], s[0:1], 104")
    a("s_load_dwordx2 s[6:7], s[0:1], 88")
    V = Alloc(1)
    t0, t1, t2, t3 = V(), V(), V(), V()
    a(f"v_lshrrev_b32 v{t0}, 6, v0")
    a(f"v_readfirstlane_b32 s20, v{t0}")
    a("s_and_b32 s21, s2, 3\ns_lshl_b32 s21, s21, 3\ns_bfe_u32 s22, s2, 0x30003\ns_add_u32 s21, s21, s22")
    a("s_bfe_u32 s22, s2, 0x10002\ns_lshl_b32 s22, s22, 2\ns_lshr_b32 s23, s2, 6\ns_add_u32 s22, s22, s23")
    ao, bo = V(), V()
    a(f"v_and_b32 v{t0}, 31, v0")
    a(f"v_lshlrev_b32 v{t0}, 4, v{t0}")
    a(f"v_bfe_u32 v{t1}, v0, 5, 1")
    a(f"v_lshl_add_u32 v{ao}, v{t1}, 15, v{t0}")
    a(f"v_lshl_add_u32 v{bo}, v{t1}, 13, v{t0}")
    a(f"s_mul_i32 s24, s20, {22*65536}\ns_lshl_b32 s25, s21, 10\ns_add_u32 s24, s24, s25")
    a(f"v_add_u32 v{ao}, s24, v{ao}")
    a(f"s_mul_i32 s24, s20, {22*16384}\ns_lshl_b32 s25, s22, 10\ns_add_u32 s24, s24, s25")
    a(f"v_add_u32 v{bo}, s24, v{bo}")
    a("s_waitcnt lgkmcnt(0)")
    srd(a, 8, "s4", "s5", NT*32768, HB)
    srd(a, 12, "s4", "s5", NT*8192, WD)
    vm = Cnt(a, "vmcnt", 63)
    RING = 15
    a("s_mov_b32 s26, 0\ns_mov_b32 s27, 0")

    def fr(i):
        return (i % RING) * 16

    def issue(i):
        if i >= 20:
            if i == 20:
                a(f"v_add_u32 v{ao}, {20*65536}, v{ao}")
                a(f"v_add_u32 v{bo}, {20*16384}, v{bo}")
            else:
                a(f"v_add_u32 v{ao}, 65536, v{ao}")
                a(f"v_add_u32 v{bo}, 16384, v{bo}")
            sa = sb = "0"
        else:
            sa, sb = "s26", "s27"
        r = fr(i)
        a(f"buffer_load_dwordx4 a[{r}:{r+3}], v{ao}, s[8:11], {sa} offen"); vm.issue(i)
        a(f"buffer_load_dwordx4 a[{r+8}:{r+11}], v{bo}, s[12:15], {sb} offen"); vm.issue(i)
        a(f"buffer_load_dwordx4 a[{r+4}:{r+7}], v{ao}, s[8:11], {sa} offen offset:512"); vm.issue(i)
        a(f"buffer_load_dwordx4 a[{r+12}:{r+15}], v{bo}, s[12:15], {sb} offen offset:512"); vm.issue(i)
        if i < 19:
            a("s_add_u32 s26, s26, 65536\ns_add_u32 s27, s27, 16384")
    for i in range(RING):
        issue(i)
    srd(a, 16, "s4", "s5", 2097152, "s40")
    ro = V()
    a("s_and_b32 s24, s20, 1\ns_lshl_b32 s24, s24, 5\ns_lshl_b32 s25, s22, 6\ns_add_u32 s28, s24, s25")
    a("s_lshr_b32 s24, s20, 1\ns_lshl_b32 s24, s24, 5\ns_lshl_b32 s25, s21, 6\ns_add_u32 s29, s24, s25")
    a(f"v_and_b32 v{t0}, 31, v0")
    a(f"v_add_u32 v{t0}, s28, v{t0}")
    a(f"v_lshlrev_b32 v{ro}, 12, v{t0}")
    a(f"v_lshl_add_u32 v{ro}, v{t1}, 3, v{ro}")
    a("s_lshl_b32 s24, s29, 1")
    a(f"v_add_u32 v{ro}, s24, v{ro}")
    RES = V(8, 4)
    ACC = V(64, 4)
    for i in range(22):
        vm.wait(i)
        r = fr(i)
        for it in range(2):
            for jt in range(2):
                c = ACC + (it*2+jt)*16
                a(f"v_mfma_f32_32x32x16_bf16 {vr(c,16)}, a[{r+4*it}:{r+4*it+3}], a[{r+8+4*jt}:{r+8+4*jt+3}], {'0' if i == 0 else vr(c,16)}")
        if i + RING < 22:
            issue(i + RING)
        if i == 7:
            for g in range(4):
                a(f"buffer_load_dwordx2 {vr(RES+2*g,2)}, v{ro}, s[16:19], 0 offen offset:{16*g}"); vm.issue("res")
    wa, rda = V(), V()
    a(f"v_and_b32 v{t0}, 63, v0")
    a(f"v_lshlrev_b32 v{t0}, 4, v{t0}")
    a("s_lshl_b32 s24, s20, 14")
    a(f"v_add_u32 v{wa}, s24, v{t0}")
    a("s_lshl_b32 s24, s20, 12")
    a(f"v_add_u32 v{rda}, s24, v{t0}")
    for tl in range(4):
        for g in range(4):
            a(f"ds_write_b128 v{wa}, {vr(ACC+tl*16+g*4,4)} offset:{tl*4096+g*1024}")
    twa, tra, oo = V(), V(), V()
    a(f"s_mul_i32 s24, s20, {32*TRS}\ns_add_u32 s24, s24, {TRO}")
    a(f"v_and_b32 v{t0}, 31, v0")
    a(f"v_mul_u32_u24 v{twa}, {TRS}, v{t0}")
    a(f"v_lshl_add_u32 v{twa}, v{t1}, 3, v{twa}")
    a(f"v_add_u32 v{twa}, s24, v{twa}")
    a(f"v_bfe_u32 v{t0}, v0, 4, 2")
    a(f"v_bfe_u32 v{t2}, v0, 2, 2")
    a(f"v_lshl_add_u32 v{t2}, v{t0}, 3, v{t2}")
    a(f"v_mul_u32_u24 v{tra}, {TRS}, v{t2}")
    a(f"v_and_b32 v{t2}, 3, v0")
    a(f"v_lshl_add_u32 v{tra}, v{t2}, 3, v{tra}")
    a(f"v_add_u32 v{tra}, s24, v{tra}")
    a("s_waitcnt lgkmcnt(0)\ns_barrier")
    P = ACC
    for w in range(4):
        for g in range(4):
            a(f"ds_read_b128 {vr(P+w*16+g*4,4)}, v{rda} offset:{w*16384+g*1024}")
    vm.wait("res")
    XR = V(16, 2)
    for g in range(4):
        for p in range(2):
            a(f"v_lshlrev_b32 v{XR+4*g+2*p}, 16, v{RES+2*g+p}")
            a(f"v_and_b32 v{XR+4*g+2*p+1}, 0xffff0000, v{RES+2*g+p}")
    a("s_waitcnt lgkmcnt(8)")
    for k in range(8):
        a(f"v_pk_add_f32 {vr(P+2*k,2)}, {vr(P+2*k,2)}, {vr(P+16+2*k,2)}")
    a("s_waitcnt lgkmcnt(0)")
    for k in range(8):
        a(f"v_pk_add_f32 {vr(P+32+2*k,2)}, {vr(P+32+2*k,2)}, {vr(P+48+2*k,2)}")
    for k in range(8):
        a(f"v_pk_add_f32 {vr(P+2*k,2)}, {vr(P+2*k,2)}, {vr(P+32+2*k,2)}")
    for k in range(8):
        a(f"v_cvt_pk_bf16_f32 v{P+16+k}, v{P+2*k}, v{P+2*k+1}")
    for k in range(8):
        a(f"v_lshlrev_b32 v{P+2*k}, 16, v{P+16+k}")
        a(f"v_and_b32 v{P+2*k+1}, 0xffff0000, v{P+16+k}")
    for k in range(8):
        a(f"v_pk_add_f32 {vr(P+2*k,2)}, {vr(P+2*k,2)}, {vr(XR+2*k,2)}")
    for k in range(8):
        a(f"v_cvt_pk_bf16_f32 v{RES+k}, v{P+2*k}, v{P+2*k+1}")
    for g in range(4):
        a(f"ds_write_b64 v{twa}, {vr(RES+2*g,2)} offset:{16*g}")
    a("s_cmp_eq_u32 s41, 1\ns_cbranch_scc1 G2_FINAL")
    srd(a, 16, "s4", "s5", 2097152, XT2)
    for g in range(4):
        a(f"buffer_store_dwordx2 {vr(RES+2*g,2)}, v{ro}, s[16:19], 0 offen offset:{16*g}")
    srd(a, 20, "s4", "s5", 16384, ST2)
    a("s_waitcnt lgkmcnt(0)")
    TT = P + 32
    for lt in range(2):
        for h in range(2):
            a(f"ds_read_b64_tr_b16 {vr(TT+4*lt+2*h,2)}, v{tra} offset:{32*lt+4*h*TRS}")
    SS = P
    for i in range(4):
        a(f"v_mov_b32 v{SS+i}, 0")
    a(f"v_mov_b32 v{t3}, {ONES_BF16}")
    a("s_waitcnt lgkmcnt(0)")
    for k in range(4):
        for lt in range(2):
            a(f"v_dot2c_f32_bf16 v{SS+lt}, v{TT+4*lt+k}, v{t3}")
            a(f"v_dot2c_f32_bf16 v{SS+2+lt}, v{TT+4*lt+k}, v{TT+4*lt+k}")
    a(f"v_permlane32_swap_b32 v{SS}, v{SS+2}")
    a(f"v_permlane32_swap_b32 v{SS+1}, v{SS+3}")
    a(f"v_add_f32 v{SS}, v{SS}, v{SS+2}")
    a(f"v_add_f32 v{SS+1}, v{SS+1}, v{SS+3}")
    a(f"v_permlane16_swap_b32 v{SS}, v{SS+1}")
    a(f"v_add_f32 v{SS}, v{SS}, v{SS+1}")
    a(f"v_and_b32 v{t0}, 31, v0")
    a(f"v_add_u32 v{t0}, s29, v{t0}")
    a(f"v_lshlrev_b32 v{t0}, 2, v{t0}")
    a(f"v_lshl_add_u32 v{t0}, v{t1}, 13, v{t0}")
    a(f"buffer_atomic_add_f32 v{SS}, v{t0}, s[20:23], 0 offen")
    a("s_endpgm")
    a.label("G2_FINAL")
    srd(a, 16, "s6", "s7", 2097152)
    a(f"v_and_b32 v{t0}, 15, v0")
    a(f"v_add_u32 v{t0}, s29, v{t0}")
    a(f"v_lshlrev_b32 v{oo}, 10, v{t0}")
    a(f"v_and_b32 v{t0}, 0x30, v0")
    a(f"v_add_u32 v{oo}, v{oo}, v{t0}")
    a("s_lshl_b32 s24, s28, 1")
    a(f"v_add_u32 v{oo}, s24, v{oo}")
    a("s_movk_i32 s25, 0x4000")
    a("s_waitcnt lgkmcnt(0)")
    for lt in range(2):
        for h in range(2):
            a(f"ds_read_b64_tr_b16 {vr(TT+4*lt+2*h,2)}, v{tra} offset:{32*lt+4*h*TRS}")
    a("s_waitcnt lgkmcnt(2)")
    a(f"buffer_store_dwordx4 {vr(TT,4)}, v{oo}, s[16:19], 0 offen")
    a("s_waitcnt lgkmcnt(0)")
    a(f"buffer_store_dwordx4 {vr(TT+4,4)}, v{oo}, s[16:19], s25 offen")
    a.label("G2_END")
    a("s_endpgm")
    return a.lines(), V.hi, RING*16, LDS


def build(extra_launch=None):
    ref = open(f"cdna_kernels/{NAME}.s.ref").read().split("\n")
    hdr = [l for l in ref if l.startswith(";") and "@launch" not in l and not l.startswith("; Override") and not l.startswith("; grid=")]
    hdr = hdr[:15]
    P, C, G1, G2 = k_prep(), k_conv(), k_g1(), k_g2()
    launches = [("prep_kernel", 492, P), ("conv1_kernel", 256, C), ("g1a_kernel", 256, G1), ("g2a_kernel", 256, G2),
                ("conv2_kernel", 256, C), ("g1b_kernel", 256, G1), ("g2b_kernel", 256, G2)]
    out = list(hdr)
    for n, g, k in launches:
        out.append(f"; @launch kernel={n} grid=({g},1,1) block=(256,1,1) lds={k[3]}")
    out.append('.amdgcn_target "amdgcn-amd-amdhsa--gfx950"')
    out.append(".text")

    def entry(n, body):
        out.append(f".globl {n}\n.p2align 8\n.type {n},@function\n{n}:")
        out.extend(body)
    entry("prep_kernel", insert_nops_fast(P[0]))

    def stub(sets, tgt):
        return [f"    s_mov_b32 s{r}, {v:#x}" for r, v in sets] + ([f"    s_branch {tgt}"] if tgt else [])
    entry("conv2_kernel", stub([(40, XT2), (41, ST2), (42, XT3)], "C_BODY"))
    entry("conv1_kernel", stub([(40, XT0), (41, ST0), (42, XT1)], None) + insert_nops_fast(C[0]))
    entry("g1b_kernel", stub([(40, XT3)], "G1_BODY"))
    entry("g1a_kernel", stub([(40, XT1)], None) + insert_nops_fast(G1[0]))
    entry("g2b_kernel", stub([(40, XT3), (41, 1)], "G2_BODY"))
    entry("g2a_kernel", stub([(40, XT1), (41, 0)], None) + insert_nops_fast(G2[0]))
    out.append('.section .rodata,"a"')
    seen = set()
    for n, g, k in launches:
        if n in seen: continue
        seen.add(n)
        out.append(".p2align 6")
        out.append(kernel_desc(n, k[1], k[2], 80))
    return "\n".join(out) + "\n"


if __name__ == "__main__":
    s = build()
    open(f"cdna_kernels/{NAME}.s", "w").write(s)
    print("written", len(s), "bytes")
```

```python
import sys, math
sys.path.insert(0, "gen")
from asmlib import *

NAME = "interleave_layers__ssm_conv_s4d__glu_gated_geglu__prompt"
XT0, XT1, XT2, XT3 = 0x0000000, 0x0200000, 0x0400000, 0x0600000
HB = 0x0800000
WGU = 0x1000000
WD = 0x1400000
KR = 0x1600000
CS = 0x1800000
ST0 = 0x1810000
ST2 = 0x1820000
NT = 172
LOG2E = 1.4426950408889634
ONES_BF16 = "0x3f803f80"


STAMP = False
STB = 0x2000000


class Stamps:
    def __init__(self, a, kid):
        self.a, self.kid, self.n = a, kid, 0

    def __call__(self, lg=None):
        if not STAMP: return
        assert self.n < 8
        self.a(f"s_memrealtime s[{80+2*self.n}:{81+2*self.n}]")
        self.a("s_waitcnt lgkmcnt(0)")
        if lg is not None: lg.q = []
        self.n += 1

    def flush(self, t0, t1, kidreg=None):
        if not STAMP: return
        a = self.a
        self()
        a(f"s_lshl_b32 s100, s2, 8")
        a(f"s_add_u32 s100, s100, {STB + self.kid*0x10000}")
        if kidreg is not None:
            a(f"s_add_u32 s100, s100, s{kidreg}")
        srd(a, 96, "s4", "s5", 256, "s100")
        a(f"v_and_b32 v{t0}, 0xc0, v0")
        for i in range(self.n):
            a(f"v_mov_b32 v{t1}, s{80+2*i}")
            a(f"buffer_store_dword v{t1}, v{t0}, s[96:99], 0 offen offset:{4*i}")


def cmul(a, d, x, y, t):
    a(f"v_pk_mul_f32 {vr(t,2)}, {vr(x,2)}, {vr(y,2)} op_sel:[0,0] op_sel_hi:[0,1]")
    a(f"v_pk_fma_f32 {vr(d,2)}, {vr(x,2)}, {vr(y,2)}, {vr(t,2)} op_sel:[1,1,0] op_sel_hi:[1,0,1] neg_lo:[1,0,0]")


def rnd_bf16(a, d, s):
    a(f"v_cvt_pk_bf16_f32 v{d}, v{s}, v{s}")
    a(f"v_lshlrev_b32 v{d}, 16, v{d}")


def k_prep():
    a = Asm()
    a("s_load_dwordx2 s[4:5], s[0:1], 104")
    a("s_cmp_lt_u32 s2, 256\ns_cbranch_scc1 P_K")
    a("s_cmp_lt_u32 s2, 320\ns_cbranch_scc1 P_X")
    a("s_cmp_lt_u32 s2, 406\ns_cbranch_scc1 P_GU")
    a("s_cmp_lt_u32 s2, 492\ns_cbranch_scc1 P_D")
    a("s_endpgm")
    hi = 0
    RS = 528
    CHS = 28160
    YO = 21 * RS
    TO = 2 * CHS
    a.label("P_K")
    V = Alloc(1)
    a("s_load_dwordx8 s[8:15], s[0:1], 8")
    a("s_load_dwordx2 s[16:17], s[0:1], 40")
    off, off2 = V(), V()
    lar, aim, cr, ci, ldt = V(), V(), V(), V(), V()
    a(f"s_lshl_b32 s3, s2, 9")
    a(f"v_lshl_add_u32 v{off}, v0, 1, s3")
    a(f"v_lshrrev_b32 v{off2}, 7, v0")
    a(f"s_lshl_b32 s6, s2, 2")
    a(f"v_lshl_add_u32 v{off2}, v{off2}, 1, s6")
    a("s_waitcnt lgkmcnt(0)")
    a(f"global_load_ushort v{ldt}, v{off2}, s[16:17]")
    a(f"global_load_ushort v{lar}, v{off}, s[8:9]")
    a(f"global_load_ushort v{aim}, v{off}, s[10:11]")
    a(f"global_load_ushort v{cr}, v{off}, s[12:13]")
    a(f"global_load_ushort v{ci}, v{off}, s[14:15]")
    waddr = V()
    t0, t1 = V(), V()
    a(f"v_lshrrev_b32 v{t0}, 7, v0")
    a(f"v_mul_u32_u24 v{t0}, {CHS}, v{t0}")
    a(f"v_and_b32 v{t1}, 127, v0")
    a(f"v_lshl_add_u32 v{waddr}, v{t1}, 2, v{t0}")
    gad = V(8)
    jj = V()
    a(f"v_lshlrev_b32 v{jj}, 3, v0")
    a(f"v_sub_u32 v{jj}, 2047, v{jj}")
    a(f"v_cmp_gt_u32 vcc, 240, v0")
    a(f"s_mov_b32 s7, {-2*0x4280 + TO}")
    for i in range(0, 8, 2):
        a(f"v_subrev_u32 v{t0}, {i}, v{jj}")
        a(f"v_subrev_u32 v{t1}, {i+1}, v{jj}")
        a(f"v_cvt_f32_u32 v{gad+i}, v{t0}")
        a(f"v_cvt_f32_u32 v{gad+i+1}, v{t1}")
        a(f"v_cvt_pk_bf16_f32 v{gad+i+1}, v{gad+i}, v{gad+i+1}")
        a(f"v_and_b32 v{gad+i}, 0xffff, v{gad+i+1}")
        a(f"v_lshrrev_b32 v{gad+i+1}, 16, v{gad+i+1}")
        a(f"v_lshl_add_u32 v{gad+i}, v{gad+i}, 1, s7")
        a(f"v_lshl_add_u32 v{gad+i+1}, v{gad+i+1}, 1, s7")
        a(f"v_lshlrev_b32 v{t0}, 1, v{t0}")
        a(f"v_lshlrev_b32 v{t1}, 1, v{t1}")
        a(f"v_add_u32 v{t0}, {TO}, v{t0}")
        a(f"v_add_u32 v{t1}, {TO}, v{t1}")
        a(f"v_cndmask_b32 v{gad+i}, v{t0}, v{gad+i}, vcc")
        a(f"v_cndmask_b32 v{gad+i+1}, v{t1}, v{gad+i+1}, vcc")
    a("s_waitcnt vmcnt(0)")
    for r in (ldt, lar, aim, cr, ci):
        a(f"v_lshlrev_b32 v{r}, 16, v{r}")
    a(f"v_mul_f32 v{ldt}, {f32bits(LOG2E)}, v{ldt}")
    a(f"v_mul_f32 v{lar}, {f32bits(LOG2E)}, v{lar}")
    a(f"v_exp_f32 v{ldt}, v{ldt}")
    a(f"v_exp_f32 v{lar}, v{lar}")
    rnd_bf16(a, ldt, ldt)
    rnd_bf16(a, lar, lar)
    dt = ldt
    a(f"v_mul_f32 v{lar}, v{lar}, v{dt}")
    a(f"v_mul_f32 v{aim}, v{aim}, v{dt}")
    a(f"v_mul_f32 v{lar}, {f32bits(-LOG2E)}, v{lar}")
    a(f"v_mul_f32 v{aim}, {f32bits(1/(2*math.pi))}, v{aim}")
    X0 = V(2)
    a(f"v_add_f32 v{dt}, v{dt}, v{dt}")
    a(f"v_mul_f32 v{X0}, v{cr}, v{dt}")
    a(f"v_mul_f32 v{X0+1}, v{ci}, v{dt}")
    w1, w8, w256 = V(2), V(2), V(2)
    tm = [V() for _ in range(4)]

    def cexp(d, e):
        a(f"v_mul_f32 v{tm[0]}, {f32bits(float(e))}, v{lar}")
        a(f"v_mul_f32 v{tm[1]}, {f32bits(float(e))}, v{aim}")
        a(f"v_exp_f32 v{tm[0]}, v{tm[0]}")
        a(f"v_fract_f32 v{tm[1]}, v{tm[1]}")
        a(f"v_cos_f32 v{tm[2]}, v{tm[1]}")
        a(f"v_sin_f32 v{tm[3]}, v{tm[1]}")
        a(f"v_mul_f32 v{d}, v{tm[0]}, v{tm[2]}")
        a(f"v_mul_f32 v{d+1}, v{tm[0]}, v{tm[3]}")
    cexp(w8, 8)
    cexp(w1, 1)
    cexp(w256, 256)
    pk = [V() for _ in range(4)]
    pki = [0]

    def putX(row, p):
        r = pk[pki[0] % 4]; pki[0] += 1
        a(f"v_cvt_pk_bf16_f32 v{r}, v{p}, -v{p+1}")
        a(f"ds_write_b32 v{waddr}, v{r} offset:{row*RS}")

    def putY(col, p):
        r = pk[pki[0] % 4]; pki[0] += 1
        a(f"v_cvt_pk_bf16_f32 v{r}, v{p}, v{p+1}")
        a(f"ds_write_b32 v{waddr}, v{r} offset:{YO+col*RS}")
    X = [X0] + [V(2) for _ in range(7)]
    Y = [V(2) for _ in range(4)]
    w32 = V(2)
    tA, tB = V(2), V(2)
    xs, ys = [], []
    xs.append(lambda: putX(0, X[0]))
    for k in range(1, 8):
        xs.append(lambda k=k: (cmul(a, X[k], X[k-1], w1, X[k]), putX(k, X[k])))
    for i, k in enumerate((0, 2, 4, 6)):
        xs.append(lambda i=i, k=k: (cmul(a, X[k], X[k], w256, tA), putX(8+i, X[k])))
    xs.append(lambda: (cmul(a, X[0], X[0], w256, tA), putX(12, X[0])))
    xs.append(lambda: (cmul(a, X[4], X[4], w256, tA), putX(13, X[4])))
    xs.append(lambda: (cmul(a, X[0], X[0], w256, tA), putX(14, X[0])))
    xs.append(lambda: (cmul(a, X[4], X[4], w256, tA), putX(15, X[4])))
    for i in range(5):
        xs.append(lambda i=i: (cmul(a, X[0], X[0], w256, tA), putX(16+i, X[0])))

    def y0():
        a(f"v_mov_b32 v{Y[0]}, 1.0\nv_mov_b32 v{Y[0]+1}, 0\nv_mov_b32 v{Y[1]}, v{w8}\nv_mov_b32 v{Y[1]+1}, v{w8+1}")
        putY(0, Y[0]); putY(1, Y[1])
    ys.append(y0)
    ys.append(lambda: (cmul(a, Y[2], w8, w8, Y[2]), putY(2, Y[2])))
    ys.append(lambda: (cmul(a, Y[3], Y[2], w8, Y[3]), putY(3, Y[3])))
    ys.append(lambda: cmul(a, w32, Y[2], Y[2], w32))
    for j in range(4, 32):
        ys.append(lambda j=j: (cmul(a, Y[j % 4], Y[j % 4], w32, tB), putY(j, Y[j % 4])))
    while xs or ys:
        if ys: ys.pop(0)()
        if xs: xs.pop(0)()
        if ys and len(ys) > len(xs): ys.pop(0)()
    aad, bad = V(), V()
    a(f"v_and_b32 v{t0}, 15, v0")
    a(f"v_mul_u32_u24 v{t0}, {RS}, v{t0}")
    a(f"v_and_b32 v{t1}, 0x30, v0")
    a(f"v_add_u32 v{t0}, v{t0}, v{t1}")
    a(f"v_lshrrev_b32 v{t1}, 7, v0")
    a(f"v_mul_u32_u24 v{t1}, {CHS}, v{t1}")
    a(f"v_add_u32 v{aad}, v{t0}, v{t1}")
    a(f"v_bfe_u32 v{t1}, v0, 6, 1")
    a(f"v_mul_u32_u24 v{t1}, {16*RS}, v{t1}")
    a(f"v_add_u32 v{bad}, v{aad}, v{t1}")
    q, jc, sa0, sa1, sa2 = V(), V(), V(), V(), V()
    a(f"v_bfe_u32 v{q}, v0, 4, 2")
    a(f"v_bfe_u32 v{jc}, v0, 6, 1")
    a(f"v_and_b32 v{t0}, 15, v0")
    a(f"v_lshl_add_u32 v{jc}, v{jc}, 4, v{t0}")
    a(f"v_lshrrev_b32 v{t1}, 7, v0")
    a(f"v_lshlrev_b32 v{t1}, 11, v{t1}")
    a(f"v_add_u32 v{t1}, {TO}, v{t1}")
    a(f"v_lshlrev_b32 v{sa0}, 3, v{q}")
    a(f"v_lshl_add_u32 v{sa0}, v{jc}, 4, v{sa0}")
    a(f"v_lshlrev_b32 v{t0}, 3, v{jc}")
    a(f"v_add_u32 v{t0}, 512, v{t0}")
    a(f"v_cmp_eq_u32 vcc, 2, v{q}")
    a(f"v_cndmask_b32 v{sa0}, v{sa0}, v{t0}, vcc")
    a(f"v_add_u32 v{sa1}, 4, v{sa0}")
    a(f"v_lshlrev_b32 v{t0}, 2, v{jc}")
    a(f"v_add_u32 v{t0}, 768, v{t0}")
    a(f"v_cmp_eq_u32 vcc, 3, v{q}")
    a(f"v_cndmask_b32 v{sa0}, v{sa0}, v{t0}, vcc")
    a(f"v_add_u32 v{t0}, 128, v{t0}")
    a(f"v_cndmask_b32 v{sa1}, v{sa1}, v{t0}, vcc")
    a(f"v_add_u32 v{sa0}, v{sa0}, v{t1}")
    a(f"v_add_u32 v{sa1}, v{sa1}, v{t1}")
    a(f"v_lshlrev_b32 v{sa2}, 8, v{q}")
    a(f"v_lshl_add_u32 v{sa2}, v{jc}, 1, v{sa2}")
    a(f"v_add_u32 v{sa2}, v{sa2}, v{t1}")
    a("s_waitcnt lgkmcnt(0)\ns_barrier")
    fr = V(96, 4)
    D0, D1 = V(4, 4), V(4, 4)
    lg = Cnt(a, "lgkmcnt", 15)
    done = 0

    def mf(s):
        lg.wait(s)
        b = fr + s * 12
        c0 = "0" if s == 0 else vr(D0, 4)
        c1 = "0" if s == 0 else vr(D1, 4)
        a(f"v_mfma_f32_16x16x32_bf16 {vr(D0,4)}, {vr(b,4)}, {vr(b+8,4)}, {c0}")
        a(f"v_mfma_f32_16x16x32_bf16 {vr(D1,4)}, {vr(b+4,4)}, {vr(b+8,4)}, {c1}")
    for s in range(8):
        if s >= 5:
            mf(done); done += 1
        b = fr + s * 12
        a(f"ds_read_b128 {vr(b,4)}, v{aad} offset:{s*64}"); lg.issue(s)
        a(f"ds_read_b128 {vr(b+4,4)}, v{aad} offset:{16*RS+s*64}"); lg.issue(s)
        a(f"ds_read_b128 {vr(b+8,4)}, v{bad} offset:{YO+s*64}"); lg.issue(s)
    while done < 8:
        mf(done); done += 1
    a(f"v_cvt_pk_bf16_f32 v{pk[0]}, v{D0}, v{D0+1}")
    a(f"v_cvt_pk_bf16_f32 v{pk[1]}, v{D0+2}, v{D0+3}")
    a(f"v_cvt_pk_bf16_f32 v{pk[2]}, v{D1}, v{D1+1}")
    a(f"v_cvt_pk_bf16_f32 v{pk[3]}, v{D1+2}, v{D1+3}")
    a(f"ds_write_b32 v{sa0}, v{pk[0]}")
    a(f"ds_write_b32 v{sa1}, v{pk[1]}")
    a(f"ds_write_b16 v{sa2}, v{pk[2]} offset:1024")
    a(f"ds_write_b16_d16_hi v{sa2}, v{pk[2]} offset:{1024+64}")
    a(f"ds_write_b16 v{sa2}, v{pk[3]} offset:{1024+128}")
    a(f"ds_write_b16_d16_hi v{sa2}, v{pk[3]} offset:{1024+192}")
    a(f"s_lshl_b32 s3, s2, 13")
    a(f"s_add_u32 s3, s3, {KR}")
    srd(a, 8, "s4", "s5", 8192, "s3")
    a(f"v_lshlrev_b32 v{off}, 4, v0")
    a("s_waitcnt lgkmcnt(0)\ns_barrier")
    o0 = fr
    g0 = fr + 8
    for ch in range(2):
        for i in range(8):
            if ch == 1 and i == 7: a("s_waitcnt lgkmcnt(8)")
            a(f"ds_read_u16 v{g0+ch*8+i}, v{gad+i} offset:{ch*2048}")
    a("s_waitcnt lgkmcnt(0)")
    for ch in range(2):
        for i in range(0, 8, 2):
            a(f"v_lshl_or_b32 v{o0+ch*4+i//2}, v{g0+ch*8+i+1}, 16, v{g0+ch*8+i}")
    a("s_movk_i32 s3, 4096")
    a(f"buffer_store_dwordx4 {vr(o0,4)}, v{off}, s[8:11], 0 offen")
    a(f"buffer_store_dwordx4 {vr(o0+4,4)}, v{off}, s[8:11], s3 offen")
    a("s_endpgm")
    hi = max(hi, V.hi)

    a.label("P_X")
    V = Alloc(1)
    XS = 1088
    a("s_load_dwordx2 s[6:7], s[0:1], 0")
    a("s_sub_u32 s3, s2, 256")
    wv, lane16 = V(), V()
    a(f"v_lshrrev_b32 v{wv}, 6, v0")
    a(f"v_readfirstlane_b32 s20, v{wv}")
    a(f"v_and_b32 v{lane16}, 63, v0")
    a(f"v_lshlrev_b32 v{lane16}, 4, v{lane16}")
    a("s_lshl_b32 s21, s3, 15")
    a("s_lshl_b32 s22, s20, 13")
    a("s_add_u32 s21, s21, s22")
    a(f"s_mul_i32 s23, s20, {8*XS}")
    a("s_waitcnt lgkmcnt(0)")
    srd(a, 8, "s6", "s7", 2097152)
    for i in range(8):
        a(f"s_add_u32 m0, s23, {i*XS}")
        a(f"buffer_load_dwordx4 v{lane16}, s[8:11], s21 offen lds")
        a(f"s_add_u32 s21, s21, 1024")
    srd(a, 12, "s4", "s5", 2097152, XT0)
    srd(a, 16, "s4", "s5", 0x20000, ST0)
    sad, t0, t1, tad, oad = V(), V(), V(), V(), V()
    a(f"v_lshrrev_b32 v{t0}, 3, v0")
    a(f"v_mul_u32_u24 v{sad}, {XS}, v{t0}")
    a(f"v_and_b32 v{t1}, 7, v0")
    a(f"v_lshl_add_u32 v{sad}, v{t1}, 4, v{sad}")
    so = V()
    a(f"s_lshl_b32 s24, s3, 7")
    a(f"v_lshl_add_u32 v{so}, v{t0}, 2, s24")
    a(f"v_cmp_eq_u32 vcc, 0, v{t1}")
    a(f"v_mov_b32 v{t0}, 0x7ffffff0")
    a(f"v_cndmask_b32 v{so}, v{t0}, v{so}, vcc")
    a(f"v_bfe_u32 v{t0}, v0, 4, 2")
    a(f"v_bfe_u32 v{t1}, v0, 2, 2")
    a(f"v_lshl_add_u32 v{t0}, v{t0}, 3, v{t1}")
    a(f"v_mul_u32_u24 v{tad}, {XS}, v{t0}")
    a(f"v_and_b32 v{t1}, 3, v0")
    a(f"v_lshl_add_u32 v{tad}, v{t1}, 3, v{tad}")
    a(f"v_lshl_add_u32 v{tad}, v{wv}, 8, v{tad}")
    a(f"v_and_b32 v{t0}, 15, v0")
    a(f"v_lshl_add_u32 v{t0}, v{wv}, 7, v{t0}")
    a(f"v_lshlrev_b32 v{oad}, 12, v{t0}")
    a(f"v_and_b32 v{t1}, 0x30, v0")
    a(f"v_add_u32 v{oad}, v{oad}, v{t1}")
    a(f"s_lshl_b32 s24, s3, 6")
    a(f"v_add_u32 v{oad}, s24, v{oad}")
    a("s_waitcnt vmcnt(0)\ns_barrier")
    d = V(32, 4)
    for i in range(8):
        a(f"ds_read_b64_tr_b16 {vr(d+4*i,2)}, v{tad} offset:{i*32}")
        if i == 7: a("s_waitcnt lgkmcnt(8)")
        a(f"ds_read_b64_tr_b16 {vr(d+4*i+2,2)}, v{tad} offset:{i*32+4*XS}")
    e = V(32, 4)
    a("s_mov_b32 s25, 0")
    a("s_waitcnt lgkmcnt(0)")
    for i in range(8):
        a(f"ds_read_b128 {vr(e+4*i,4)}, v{sad} offset:{i*128}")
    for i in range(8):
        a(f"buffer_store_dwordx4 {vr(d+4*i,4)}, v{oad}, s[12:15], s25 offen")
        a(f"s_add_u32 s25, s25, 65536")
    sm, sq, one = V(), V(), V()
    a(f"v_mov_b32 v{sm}, 0\nv_mov_b32 v{sq}, 0\nv_mov_b32 v{one}, {ONES_BF16}")
    a("s_waitcnt lgkmcnt(0)")
    for i in range(32):
        a(f"v_dot2c_f32_bf16 v{sm}, v{e+i}, v{one}")
        a(f"v_dot2c_f32_bf16 v{sq}, v{e+i}, v{e+i}")
    for m in ("quad_perm:[1,0,3,2]", "quad_perm:[2,3,0,1]", "row_half_mirror"):
        a(f"v_add_f32_dpp v{sm}, v{sm}, v{sm} {m} row_mask:0xf bank_mask:0xf")
        a(f"v_add_f32_dpp v{sq}, v{sq}, v{sq} {m} row_mask:0xf bank_mask:0xf")
    a(f"v_mov_b32 v{one}, 0")
    a("s_movk_i32 s25, 0x2000")
    a(f"s_mov_b32 s26, {ST2-ST0}")
    a(f"s_mov_b32 s27, {ST2-ST0+0x2000}")
    a(f"buffer_store_dword v{sm}, v{so}, s[16:19], 0 offen")
    a(f"buffer_store_dword v{sq}, v{so}, s[16:19], s25 offen")
    a(f"buffer_store_dword v{one}, v{so}, s[16:19], s26 offen")
    a(f"buffer_store_dword v{one}, v{so}, s[16:19], s27 offen")
    a("s_endpgm")
    hi = max(hi, V.hi)

    a.label("P_GU")
    V = Alloc(1)
    a("s_load_dwordx4 s[8:11], s[0:1], 64")
    a("s_sub_u32 s3, s2, 320")
    t0, t1, goff, wad, wv = V(), V(), V(), V(), V()
    a(f"v_lshrrev_b32 v{t0}, 1, v0")
    a(f"v_mul_u32_u24 v{goff}, 2752, v{t0}")
    a(f"v_and_b32 v{t1}, 1, v0")
    a(f"v_lshl_add_u32 v{goff}, v{t1}, 4, v{goff}")
    a(f"s_lshl_b32 s20, s3, 5")
    a(f"v_add_u32 v{goff}, s20, v{goff}")
    a(f"v_lshlrev_b32 v{wad}, 5, v{t0}")
    a(f"v_lshl_add_u32 v{wad}, v{t1}, 14, v{wad}")
    a("s_waitcnt lgkmcnt(0)")
    srd(a, 12, "s8", "s9", 512*2752)
    srd(a, 16, "s10", "s11", 512*2752)
    G = V(32, 4)
    a("s_mov_b32 s21, 0")
    for it in range(4):
        a(f"buffer_load_dwordx4 {vr(G+8*it,4)}, v{goff}, s[12:15], s21 offen")
        a(f"buffer_load_dwordx4 {vr(G+8*it+4,4)}, v{goff}, s[16:19], s21 offen")
        a(f"s_add_u32 s21, s21, {128*2752}")
    tad, oad = V(), V()
    a(f"v_lshrrev_b32 v{wv}, 6, v0")
    a(f"v_bfe_u32 v{t0}, v0, 4, 2")
    a(f"v_bfe_u32 v{t1}, v0, 2, 2")
    a(f"v_lshl_add_u32 v{t0}, v{t0}, 3, v{t1}")
    a(f"v_lshlrev_b32 v{tad}, 5, v{t0}")
    a(f"v_and_b32 v{t1}, 3, v0")
    a(f"v_lshl_add_u32 v{tad}, v{t1}, 3, v{tad}")
    a(f"v_lshl_add_u32 v{tad}, v{wv}, 13, v{tad}")
    a(f"v_and_b32 v{t0}, 63, v0")
    a(f"v_lshlrev_b32 v{oad}, 4, v{t0}")
    a(f"v_lshl_add_u32 v{oad}, v{wv}, 13, v{oad}")
    a(f"s_lshl_b32 s20, s3, 15")
    a(f"s_add_u32 s20, s20, {WGU}")
    srd(a, 24, "s4", "s5", 32768, "s20")
    a(f"s_lshl_b32 s20, s3, 8")
    a(f"s_add_u32 s20, s20, {CS}")
    srd(a, 28, "s4", "s5", 256, "s20")
    for it in range(4):
        a(f"s_waitcnt vmcnt({6-2*it})")
        a(f"v_add_u32 v{t0}, {it*4096}, v{wad}")
        for qq in range(4):
            a(f"ds_write2_b32 v{t0}, v{G+8*it+qq}, v{G+8*it+4+qq} offset0:{2*qq} offset1:{2*qq+1}")
        a("s_waitcnt lgkmcnt(4)") if it >= 2 else None
    a("s_waitcnt lgkmcnt(0)\ns_barrier")
    for i in range(8):
        a(f"ds_read_b64_tr_b16 {vr(G+4*i,2)}, v{tad} offset:{i*1024}")
        if i == 7: a("s_waitcnt lgkmcnt(8)")
        a(f"ds_read_b64_tr_b16 {vr(G+4*i+2,2)}, v{tad} offset:{i*1024+128}")
    sm, sm2, one = V(), V(), V()
    a(f"v_mov_b32 v{sm}, 0\nv_mov_b32 v{one}, {ONES_BF16}")
    a("s_movk_i32 s21, 4096")
    a("s_waitcnt lgkmcnt(0)")
    for i in range(8):
        so = "0" if i < 4 else "s21"
        a(f"buffer_store_dwordx4 {vr(G+4*i,4)}, v{oad}, s[24:27], {so} offen offset:{(i%4)*1024}")
    for i in range(32):
        a(f"v_dot2c_f32_bf16 v{sm}, v{G+i}, v{one}")
    a(f"v_mov_b32 v{sm2}, v{sm}")
    a(f"v_permlane32_swap_b32 v{sm}, v{sm2}")
    a(f"v_add_f32 v{sm}, v{sm}, v{sm2}")
    a(f"v_mov_b32 v{sm2}, v{sm}")
    a(f"v_permlane16_swap_b32 v{sm}, v{sm2}")
    a(f"v_add_f32 v{sm}, v{sm}, v{sm2}")
    a(f"v_and_b32 v{t0}, 15, v0")
    a(f"v_lshlrev_b32 v{t0}, 2, v{t0}")
    a(f"v_lshl_add_u32 v{t0}, v{wv}, 6, v{t0}")
    a(f"buffer_store_dword v{sm}, v{t0}, s[28:31], 0 offen")
    a("s_endpgm")
    hi = max(hi, V.hi)

    a.label("P_D")
    V = Alloc(1)
    a("s_load_dwordx2 s[6:7], s[0:1], 80")
    a("s_sub_u32 s3, s2, 406")
    wv, lane16, t0, t1, tad, oad = V(), V(), V(), V(), V(), V()
    a(f"v_lshrrev_b32 v{wv}, 6, v0")
    a(f"v_readfirstlane_b32 s20, v{wv}")
    a(f"v_and_b32 v{lane16}, 63, v0")
    a(f"v_lshlrev_b32 v{lane16}, 4, v{lane16}")
    a("s_lshl_b32 s21, s3, 14")
    a("s_lshl_b32 s22, s20, 12")
    a("s_add_u32 s21, s21, s22")
    a(f"s_mul_i32 s23, s20, {4*XS}")
    a("s_waitcnt lgkmcnt(0)")
    srd(a, 8, "s6", "s7", 1376*1024)
    for i in range(4):
        a(f"s_add_u32 m0, s23, {i*XS}")
        a(f"buffer_load_dwordx4 v{lane16}, s[8:11], s21 offen lds")
        a(f"s_add_u32 s21, s21, 1024")
    a(f"s_lshl_b32 s20, s3, 14")
    a(f"s_add_u32 s20, s20, {WD}")
    srd(a, 12, "s4", "s5", 16384, "s20")
    a(f"v_bfe_u32 v{t0}, v0, 7, 1")
    a(f"v_bfe_u32 v{t1}, v0, 2, 2")
    a(f"v_lshl_add_u32 v{t0}, v{t0}, 3, v{t1}")
    a(f"v_mul_u32_u24 v{tad}, {XS}, v{t0}")
    a(f"v_and_b32 v{t1}, 3, v0")
    a(f"v_lshl_add_u32 v{tad}, v{t1}, 3, v{tad}")
    a(f"v_bfe_u32 v{t1}, v0, 4, 2")
    a(f"v_lshl_add_u32 v{tad}, v{t1}, 5, v{tad}")
    a(f"v_bfe_u32 v{t1}, v0, 6, 1")
    a(f"v_lshl_add_u32 v{tad}, v{t1}, 9, v{tad}")
    a(f"v_lshl_add_u32 v{oad}, v{wv}, 12, v{lane16}")
    a("s_waitcnt vmcnt(0)\ns_barrier")
    d = V(16, 4)
    for i in range(4):
        a(f"ds_read_b64_tr_b16 {vr(d+4*i,2)}, v{tad} offset:{i*128}")
        a(f"ds_read_b64_tr_b16 {vr(d+4*i+2,2)}, v{tad} offset:{i*128+4*XS}")
    for i in range(4):
        a(f"s_waitcnt lgkmcnt({6-2*i})")
        a(f"buffer_store_dwordx4 {vr(d+4*i,4)}, v{oad}, s[12:15], 0 offen offset:{i*1024}")
    a("s_endpgm")
    hi = max(hi, V.hi)
    return a.lines(), hi, 0, 60416


def ln_finalize_pair(a, S, Q, M, RS_, t, inv_n_s):
    a(f"v_pk_mul_f32 {vr(S,2)}, {vr(S,2)}, {sr(inv_n_s,2)}")
    a(f"v_pk_mul_f32 {vr(Q,2)}, {vr(Q,2)}, {sr(inv_n_s,2)}")
    a(f"v_pk_fma_f32 {vr(Q,2)}, {vr(S,2)}, {vr(S,2)}, {vr(Q,2)} neg_lo:[1,0,0] neg_hi:[1,0,0]")
    a(f"v_cvt_pk_bf16_f32 v{t}, v{S}, v{S+1}")
    a(f"v_max_f32 v{Q}, 0, v{Q}")
    a(f"v_max_f32 v{Q+1}, 0, v{Q+1}")
    a(f"v_lshlrev_b32 v{M}, 16, v{t}")
    a(f"v_and_b32 v{M+1}, 0xffff0000, v{t}")
    a(f"v_cvt_pk_bf16_f32 v{t}, v{Q}, v{Q+1}")
    a(f"v_lshlrev_b32 v{Q}, 16, v{t}")
    a(f"v_and_b32 v{Q+1}, 0xffff0000, v{t}")
    a(f"v_add_f32 v{Q}, {f32bits(1e-5)}, v{Q}")
    a(f"v_add_f32 v{Q+1}, {f32bits(1e-5)}, v{Q+1}")
    a(f"v_cvt_pk_bf16_f32 v{t}, v{Q}, v{Q+1}")
    a(f"v_lshlrev_b32 v{Q}, 16, v{t}")
    a(f"v_and_b32 v{Q+1}, 0xffff0000, v{t}")
    a(f"v_sqrt_f32 v{Q}, v{Q}")
    a(f"v_sqrt_f32 v{Q+1}, v{Q+1}")
    a(f"v_cvt_pk_bf16_f32 v{t}, v{Q}, v{Q+1}")
    a(f"v_lshlrev_b32 v{RS_}, 16, v{t}")
    a(f"v_and_b32 v{RS_+1}, 0xffff0000, v{t}")


def k_conv():
    a = Asm()
    KC, KCH = 4160, 16640
    UO, UCH = 33280, 4608
    YP = 42496
    LDS = YP + 4 * 8192
    a.label("C_BODY")
    a("s_cmp_ge_u32 s2, 256\ns_cbranch_scc1 C_END")
    st = Stamps(a, 1)
    st()
    a("s_load_dwordx2 s[4:5], s[0:1], 104")
    a("s_load_dwordx2 s[6:7], s[0:1], 48")
    V = Alloc(1)
    o16, o32 = V(), V()
    t0, t1, t2 = V(), V(), V()
    aad, bad, yad = V(), V(), V()
    XF = V(16, 2)
    UF = V(16, 2)
    UP = V(8, 4)
    mk = V.mark()
    a(f"v_lshlrev_b32 v{o16}, 4, v0")
    a(f"v_lshlrev_b32 v{o32}, 5, v0")
    a("s_lshl_b32 s3, s2, 13")
    a("s_add_u32 s40, s40, s3")
    a("s_add_u32 s42, s42, s3")
    a(f"s_add_u32 s43, s3, {KR}")
    a(f"s_add_u32 s44, s3, {KR+4096}")
    a("s_lshl_b32 s45, s2, 2")
    a("s_movk_i32 s46, 0x1000")
    a("s_movk_i32 s47, 0x2000")
    a("s_waitcnt lgkmcnt(0)")
    a("s_load_dword s48, s[6:7], s45")
    srd(a, 8, "s4", "s5", 16384, "s41")
    srd(a, 12, "s4", "s5", 8192, "s40")
    S, Q = V(8, 4), V(8, 4)
    XR = V(8, 4)
    vm = Cnt(a, "vmcnt", 63)
    a(f"buffer_load_dwordx4 {vr(S,4)}, v{o32}, s[8:11], 0 offen"); vm.issue("st")
    a(f"buffer_load_dwordx4 {vr(S+4,4)}, v{o32}, s[8:11], 0 offen offset:16"); vm.issue("st")
    a(f"buffer_load_dwordx4 {vr(Q,4)}, v{o32}, s[8:11], s47 offen"); vm.issue("st")
    a(f"buffer_load_dwordx4 {vr(Q+4,4)}, v{o32}, s[8:11], s47 offen offset:16"); vm.issue("st")
    a(f"buffer_load_dwordx4 {vr(XR,4)}, v{o16}, s[12:15], 0 offen"); vm.issue("x")
    a(f"buffer_load_dwordx4 {vr(XR+4,4)}, v{o16}, s[12:15], s46 offen"); vm.issue("x")
    srd(a, 16, "s4", "s5", 4096, "s43")
    srd(a, 20, "s4", "s5", 4096, "s44")
    KA = V(24, 4)
    for ch in range(2):
        for p in range(3):
            a(f"buffer_load_dwordx4 {vr(KA+ch*12+p*4,4)}, v{o16}, s[{16+4*ch}:{19+4*ch}], 0 offen offset:{4*p}")
            vm.issue(f"k{ch}")
    srd(a, 24, "s4", "s5", 8192, "s42")
    a(f"v_add_u32 v{o32}, {YP}, v{o32}")
    Z = V(4, 4)
    for i in range(4):
        a(f"v_mov_b32 v{Z+i}, 0")
    a(f"v_bfe_u32 v{t0}, v0, 5, 1")
    a(f"v_mul_u32_u24 v{t0}, {UCH}, v{t0}")
    a(f"v_and_b32 v{t1}, 31, v0")
    a(f"v_lshl_add_u32 v{t0}, v{t1}, 4, v{t0}")
    a(f"v_add_u32 v{t0}, {UO}, v{t0}")
    a(f"v_bfe_u32 v{t1}, v0, 1, 3")
    a(f"v_mul_u32_u24 v{t1}, {KC}, v{t1}")
    a(f"v_and_b32 v{t2}, 1, v0")
    a(f"v_lshl_add_u32 v{t1}, v{t2}, 4, v{t1}")
    a(f"v_add_u32 v{t1}, 4096, v{t1}")
    a(f"v_cmp_gt_u32 vcc, 64, v0")
    a(f"v_cndmask_b32 v{t0}, v{t1}, v{t0}, vcc")
    a(f"ds_write_b128 v{t0}, {vr(Z,4)}")
    a(f"v_and_b32 v{t0}, 3, v0")
    a(f"v_sub_u32 v{t0}, 3, v{t0}")
    a(f"v_mul_u32_u24 v{aad}, {KC}, v{t0}")
    a(f"v_bfe_u32 v{t0}, v0, 2, 2")
    a(f"v_lshlrev_b32 v{t0}, 3, v{t0}")
    a(f"v_sub_u32 v{aad}, v{aad}, v{t0}")
    a(f"v_and_b32 v{t1}, 0x30, v0")
    a(f"v_add_u32 v{aad}, v{aad}, v{t1}")
    a(f"v_bfe_u32 v{t0}, v0, 6, 1")
    a(f"v_lshlrev_b32 v{t0}, 8, v{t0}")
    a(f"v_sub_u32 v{aad}, v{aad}, v{t0}")
    a(f"v_lshrrev_b32 v{t2}, 7, v0")
    a(f"v_mul_u32_u24 v{bad}, {KCH}, v{t2}")
    a(f"v_add_u32 v{aad}, v{aad}, v{bad}")
    a(f"v_add_u32 v{aad}, {4056-3584-192}, v{aad}")
    a(f"v_mul_u32_u24 v{bad}, {UCH}, v{t2}")
    a(f"v_sub_u32 v{bad}, v{bad}, v{t0}")
    a(f"v_add_u32 v{bad}, v{bad}, v{t1}")
    a(f"v_and_b32 v{t0}, 15, v0")
    a(f"v_lshl_add_u32 v{bad}, v{t0}, 5, v{bad}")
    a(f"v_add_u32 v{bad}, {UO+480-192}, v{bad}")
    a(f"v_lshrrev_b32 v{t2}, 6, v0")
    a(f"v_lshlrev_b32 v{yad}, 13, v{t2}")
    a(f"v_lshl_add_u32 v{yad}, v{t0}, 6, v{yad}")
    a(f"v_add_u32 v{yad}, v{yad}, v{t1}")
    a(f"s_mov_b32 s30, {f32bits(1/512)}\ns_mov_b32 s31, {f32bits(1/512)}")
    M, R = V(8, 2), V(8, 2)
    st()
    vm.wait("st")
    st()
    for p in range(4):
        ln_finalize_pair(a, S+2*p, Q+2*p, M+2*p, R+2*p, [t0, t1, t2, t0][p], 30)
    for i in range(8):
        a(f"v_rcp_f32 v{R+i}, v{R+i}")
    vm.wait("x")
    a("s_waitcnt lgkmcnt(0)")
    a("s_lshl_b32 s50, s48, 16\ns_mov_b32 s51, s50\ns_and_b32 s52, s48, 0xffff0000\ns_mov_b32 s53, s52")
    for ch in range(2):
        for p in range(4):
            x = XF + ch*8 + 2*p
            u = UF + ch*8 + 2*p
            tt = [t0, t1][p & 1]
            a(f"v_lshlrev_b32 v{x}, 16, v{XR+ch*4+p}")
            a(f"v_and_b32 v{x+1}, 0xffff0000, v{XR+ch*4+p}")
            a(f"v_pk_add_f32 {vr(u,2)}, {vr(x,2)}, {vr(M+2*p,2)} neg_lo:[0,1] neg_hi:[0,1]")
            a(f"v_cvt_pk_bf16_f32 v{tt}, v{u}, v{u+1}")
            a(f"v_lshlrev_b32 v{u}, 16, v{tt}")
            a(f"v_and_b32 v{u+1}, 0xffff0000, v{tt}")
            a(f"v_pk_mul_f32 {vr(u,2)}, {vr(u,2)}, {vr(R+2*p,2)}")
            a(f"v_cvt_pk_bf16_f32 v{UP+ch*4+p}, v{u}, v{u+1}")
        a(f"ds_write_b128 v{o16}, {vr(UP+ch*4,4)} offset:{UO+ch*UCH+512}")
    O1, O3 = V(4, 4), V(4, 4)
    st()
    for ch in range(2):
        vm.wait(f"k{ch}")
        A_, B_, C_ = KA+ch*12, KA+ch*12+4, KA+ch*12+8
        a(f"ds_write_b128 v{o16}, {vr(A_,4)} offset:{ch*KCH}")
        a(f"ds_write_b128 v{o16}, {vr(B_,4)} offset:{ch*KCH+2*KC}")
        o1, o3 = (O1, O3) if ch == 0 else (S, Q)
        for i in range(4):
            a(f"v_alignbit_b32 v{o1+i}, v{B_+i}, v{A_+i}, 16")
        a(f"ds_write_b128 v{o16}, {vr(o1,4)} offset:{ch*KCH+KC}")
        for i in range(4):
            a(f"v_alignbit_b32 v{o3+i}, v{C_+i}, v{B_+i}, 16")
        a(f"ds_write_b128 v{o16}, {vr(o3,4)} offset:{ch*KCH+3*KC}")
    for ch in range(2):
        for p in range(4):
            u = UF + ch*8 + 2*p
            tt = [t0, t1][p & 1]
            a(f"v_lshlrev_b32 v{u}, 16, v{UP+ch*4+p}")
            a(f"v_and_b32 v{u+1}, 0xffff0000, v{UP+ch*4+p}")
            a(f"v_pk_mul_f32 {vr(u,2)}, {vr(u,2)}, {sr(50+2*ch,2)}")
            a(f"v_cvt_pk_bf16_f32 v{tt}, v{u}, v{u+1}")
            a(f"v_lshlrev_b32 v{u}, 16, v{tt}")
            a(f"v_and_b32 v{u+1}, 0xffff0000, v{tt}")
    a("s_waitcnt lgkmcnt(0)\ns_barrier")
    st()
    V.release(mk)
    ACC = V(32, 4)
    FB = [V(64, 4), V(64, 4)]
    lg = Cnt(a, "lgkmcnt", 15)

    def reads(rp):
        f = FB[rp & 1]
        out = []
        for i in range(8):
            def rb(i=i):
                lg.room(1)
                a(f"ds_read_b128 {vr(f+32+4*i,4)}, v{bad} offset:{512*i+64*(3-rp)}"); lg.issue((rp, i))
            def ra0(i=i):
                lg.room(1)
                a(f"ds_read_b64 {vr(f+4*i,2)}, v{aad} offset:{512*(7-i)+64*(3-rp)}"); lg.issue((rp, i))
            def ra1(i=i):
                lg.room(1)
                a(f"ds_read_b64 {vr(f+4*i+2,2)}, v{aad} offset:{512*(7-i)+64*(3-rp)+8}"); lg.issue((rp, i))
            out += [rb, ra0, ra1]
        return out
    allr = [(rp, k // 3, fn) for rp in range(4) for k, fn in enumerate(reads(rp))]
    ptr = 0
    while ptr < 12:
        allr[ptr][2](); ptr += 1
    for rp in range(4):
        f = FB[rp & 1]
        pairs = sorted([(q, m) for q in range(8) for m in range(8) if q + m <= 7], key=lambda x: (max(x), x[0] + x[1]))
        seen = set()
        for (q, m) in pairs:
            lv = max(q, m)
            while ptr < len(allr) and allr[ptr][:2] <= (rp, lv):
                allr[ptr][2](); ptr += 1
            lg.wait((rp, lv))
            c = q + m
            cc = "0" if (rp == 0 and c not in seen) else vr(ACC+4*c, 4)
            seen.add(c)
            a(f"v_mfma_f32_16x16x32_bf16 {vr(ACC+4*c,4)}, {vr(f+4*q,4)}, {vr(f+32+4*m,4)}, {cc}")
            if ptr < len(allr) and allr[ptr][0] <= rp + 1:
                allr[ptr][2](); ptr += 1
    st()
    for c in range(8):
        a(f"ds_write_b128 v{yad}, {vr(ACC+4*c,4)} offset:{YP+1024*c}")
    a("s_waitcnt lgkmcnt(0)\ns_barrier")
    Y = FB[0]
    for ch in range(2):
        for h in range(2):
            for k in range(2):
                a(f"ds_read_b128 {vr(Y+ch*16+h*8+k*4,4)}, v{o32} offset:{(2*ch+h)*8192+16*k}")
    for ch in range(2):
        a(f"s_waitcnt lgkmcnt({4-4*ch})")
        for p in range(4):
            y = Y + ch*16 + 2*p
            u = UF + ch*8 + 2*p
            x = XF + ch*8 + 2*p
            tt = [t0, t1][p & 1]
            a(f"v_pk_add_f32 {vr(y,2)}, {vr(y,2)}, {vr(y+8,2)}")
            a(f"v_pk_add_f32 {vr(y,2)}, {vr(y,2)}, {vr(u,2)}")
            a(f"v_cvt_pk_bf16_f32 v{tt}, v{y}, v{y+1}")
            a(f"v_lshlrev_b32 v{y}, 16, v{tt}")
            a(f"v_and_b32 v{y+1}, 0xffff0000, v{tt}")
            a(f"v_pk_add_f32 {vr(y,2)}, {vr(y,2)}, {vr(x,2)}")
            a(f"v_cvt_pk_bf16_f32 v{UP+ch*4+p}, v{y}, v{y+1}")
        a(f"buffer_store_dwordx4 {vr(UP+ch*4,4)}, v{o16}, s[24:27], {'0' if ch == 0 else 's46'} offen")
    st.flush(t0, t1, 79)
    a.label("C_END")
    a("s_endpgm")
    return a.lines(), V.hi, 0, LDS


def k_g1():
    a = Asm()
    STO = 131072
    LDS = STO + 2048
    a.label("G1_BODY")
    a("s_cmp_ge_u32 s2, 256\ns_cbranch_scc1 G1_END")
    st = Stamps(a, 2)
    st()
    a("s_load_dwordx2 s[4:5], s[0:1], 104")
    V = Alloc(1)
    t0, t1, t2, t3 = V(), V(), V(), V()
    a(f"v_lshrrev_b32 v{t0}, 6, v0")
    a(f"v_readfirstlane_b32 s20, v{t0}")
    a("s_and_b32 s21, s2, 1\ns_lshl_b32 s21, s21, 3\ns_bfe_u32 s22, s2, 0x30003\ns_add_u32 s21, s21, s22")
    a("s_bfe_u32 s22, s2, 0x20001\ns_lshl_b32 s22, s22, 2\ns_lshr_b32 s23, s2, 6\ns_add_u32 s22, s22, s23")
    a("s_lshl_b32 s23, s22, 2\ns_add_u32 s23, s23, s20")
    a("s_mul_i32 s24, s23, 43\ns_add_u32 s25, s24, 43\ns_lshr_b32 s24, s24, 4\ns_lshr_b32 s25, s25, 4")
    a("s_sub_u32 s25, s25, s24")
    xo = V()
    a(f"v_bfe_u32 v{t0}, v0, 4, 2")
    a(f"v_bfe_u32 v{t1}, v0, 7, 1")
    a(f"v_lshl_or_b32 v{t1}, v{t1}, 2, v{t0}")
    a(f"v_bfe_u32 v{t2}, v0, 1, 3")
    a(f"v_xor_b32 v{t1}, v{t1}, v{t2}")
    a(f"v_lshrrev_b32 v{t2}, 4, v0")
    a(f"v_lshlrev_b32 v{xo}, 12, v{t2}")
    a(f"v_lshl_add_u32 v{xo}, v{t1}, 5, v{xo}")
    a(f"v_and_b32 v{t1}, 1, v0")
    a(f"v_lshl_add_u32 v{xo}, v{t1}, 4, v{xo}")
    a("s_lshl_b32 s26, s21, 8")
    a(f"v_add_u32 v{xo}, s26, v{xo}")
    wo = V(4)
    a(f"v_and_b32 v{t0}, 63, v0")
    a(f"v_lshlrev_b32 v{wo}, 4, v{t0}")
    for g in range(1, 4):
        a(f"v_add_u32 v{wo+g}, {4096*g}, v{wo}")
    a("s_lshl_b32 s27, s24, 14")
    a(f"s_add_u32 s27, s27, {WGU}")
    a("s_add_u32 s28, s27, 16384\ns_add_u32 s29, s27, 32768")
    a("s_cmp_eq_u32 s25, 3\ns_cselect_b32 s30, 16384, 0\ns_cselect_b32 s31, 32768, 0\ns_lshl_b32 s32, s25, 7")
    a("s_lshl_b32 s33, s20, 10")
    a("s_waitcnt lgkmcnt(0)")
    srd(a, 8, "s4", "s5", 2097152, "s40")
    srd(a, 44, "s4", "s5", 16384, "s27")
    srd(a, 48, "s4", "s5", 16384, "s28")
    srd(a, 52, "s4", "s5", "s30", "s29")
    vm = Cnt(a, "vmcnt", 63)
    a("s_mov_b32 s34, 0")

    def issue_step(s):
        for mm in (2*s, 2*s+1):
            a(f"s_add_u32 m0, s33, {mm*4096}")
            a(f"buffer_load_dwordx4 v{xo}, s[8:11], s34 offen lds"); vm.issue(("x", s))
            a("s_add_u32 s34, s34, 65536")
        for j in range(3):
            r = (j*16+s)*4
            a(f"buffer_load_dwordx4 a[{r}:{r+3}], v{wo+s//4}, s[{44+4*j}:{47+4*j}], 0 offen offset:{(s%4)*1024}")
            vm.issue(("w", s))
    PRE = 12
    for s in range(PRE):
        issue_step(s)
    a("s_lshl_b32 s27, s24, 15")
    a(f"s_add_u32 s27, s27, {HB}")
    a("s_add_u32 s28, s27, 32768\ns_add_u32 s29, s27, 65536")
    srd(a, 56, "s4", "s5", 32768, "s27")
    srd(a, 60, "s4", "s5", 32768, "s28")
    srd(a, 64, "s4", "s5", "s31", "s29")
    a("s_lshl_b32 s27, s24, 7")
    a(f"s_add_u32 s27, s27, {CS}")
    srd(a, 68, "s4", "s5", "s32", "s27")
    ra = V(8)
    a(f"v_bfe_u32 v{t0}, v0, 4, 2")
    a(f"v_bfe_u32 v{t1}, v0, 2, 2")
    a(f"v_lshl_add_u32 v{t2}, v{t0}, 3, v{t1}")
    a(f"v_lshlrev_b32 v{t2}, 8, v{t2}")
    a(f"v_and_b32 v{t3}, 3, v0")
    a(f"v_lshl_add_u32 v{t2}, v{t3}, 3, v{t2}")
    a(f"v_and_b32 v{t0}, 1, v{t0}")
    a(f"v_lshl_or_b32 v{t1}, v{t0}, 2, v{t1}")
    a("s_lshl_b32 s35, s20, 1")
    for i in range(8):
        a(f"s_add_u32 s36, s35, {i}\ns_and_b32 s36, s36, 7")
        a(f"v_xor_b32 v{t0}, s36, v{t1}")
        a(f"v_lshl_add_u32 v{ra+i}, v{t0}, 5, v{t2}")
    ACC = V(96, 4)
    XF = [V(32, 4), V(32, 4)]
    ST = V(4, 2)
    one = V()
    for i in range(4):
        a(f"v_mov_b32 v{ST+i}, 0")
    a(f"v_mov_b32 v{one}, {ONES_BF16}")
    lg = Cnt(a, "lgkmcnt", 15)

    def xreads(s):
        out = []
        for i in range(8):
            for h in range(2):
                def f(i=i, h=h):
                    a(f"ds_read_b64_tr_b16 {vr(XF[s&1]+4*i+2*h,2)}, v{ra+i} offset:{(s%8)*8192+h*1024}")
                    lg.issue((s, i))
                out.append(f)
        return out
    CSR = V(24, 4)
    st()
    vm.wait(("x", 0))
    a("s_barrier")
    st()
    for f in xreads(0):
        f()
    for s in range(16):
        fill = []
        if s in (4, 10): st(lg)
        if s < 15:
            vm.wait(("x", s+1))
            a("s_barrier")
            if s + 1 == 8:
                for i in range(8):
                    a(f"v_add_u32 v{ra+i}, 0x10000, v{ra+i}")
            fill += xreads(s+1)
        if s + PRE < 16:
            issue_step(s + PRE)
        if s == 4:
            a(f"v_and_b32 v{t0}, 0x30, v0")
            for j in range(3):
                for h in range(2):
                    a(f"buffer_load_dwordx4 {vr(CSR+8*j+4*h,4)}, v{t0}, s[68:71], 0 offen offset:{128*j+64*h}")
                    vm.issue("cs")
        vm.wait(("w", s))
        x = XF[s & 1]
        dots = []
        for i in range(2):
            for k in range(4):
                dots.append(f"v_dot2c_f32_bf16 v{ST+i}, v{x+4*i+k}, v{one}")
                dots.append(f"v_dot2c_f32_bf16 v{ST+2+i}, v{x+4*i+k}, v{x+4*i+k}")
        n = 0
        for i in range(8):
            lg.wait((s, i))
            for j in range(3):
                r = (j*16+s)*4
                c = ACC + (i*3+j)*4
                a(f"v_mfma_f32_16x16x32_bf16 {vr(c,4)}, a[{r}:{r+3}], {vr(x+4*i,4)}, {'0' if s == 0 else vr(c,4)}")
                n += 1
                if fill:
                    fill.pop(0)()
                if n > 6 and dots and (not fill or n % 3 == 0):
                    a(dots.pop(0))
                    if not fill and dots:
                        a(dots.pop(0))
        for dd in dots:
            a(dd)
    st()
    T = XF[0]
    for i in range(4):
        a(f"v_mov_b32 v{T+i}, v{ST+i}")
    for i in range(4):
        a(f"v_permlane32_swap_b32 v{ST+i}, v{T+i}")
    for i in range(4):
        a(f"v_add_f32 v{ST+i}, v{ST+i}, v{T+i}")
    for i in range(4):
        a(f"v_mov_b32 v{T+i}, v{ST+i}")
    for i in range(4):
        a(f"v_permlane16_swap_b32 v{ST+i}, v{T+i}")
    for i in range(4):
        a(f"v_add_f32 v{ST+i}, v{ST+i}, v{T+i}")
    a(f"s_mov_b32 s36, {f32bits(1/512)}\ns_mov_b32 s37, {f32bits(1/512)}")
    M, S = T+4, T+6
    ln_finalize_pair(a, ST, ST+2, M, S, t0, 36)
    c0 = -2*math.sqrt(2/math.pi)*LOG2E
    c1 = c0*0.044715
    O = T+8
    for i in range(2):
        a(f"v_rcp_f32 v{t1+i}, v{S+i}")
    for i in range(2):
        o = O + 4*i
        a(f"v_sub_f32 v{o}, 0, v{M+i}")
        a(f"v_mul_f32 v{o+3}, v{S+i}, v{S+i}")
        a(f"v_mul_f32 v{o+1}, {f32bits(c0)}, v{t1+i}")
        a(f"v_mul_f32 v{o+2}, v{t1+i}, v{t1+i}")
        a(f"v_mul_f32 v{o+2}, v{o+2}, v{t1+i}")
        a(f"v_mul_f32 v{o+2}, {f32bits(c1)}, v{o+2}")
    a(f"v_and_b32 v{t0}, 15, v0")
    a(f"v_lshlrev_b32 v{t0}, 4, v{t0}")
    a(f"s_lshl_b32 s36, s20, 9")
    a(f"v_add_u32 v{t3}, s36, v{t0}")
    a(f"v_add_u32 v{t3}, {STO}, v{t3}")
    a(f"ds_write_b128 v{t3}, {vr(O,4)}")
    a(f"ds_write_b128 v{t3}, {vr(O+4,4)} offset:256")
    vm.wait("cs")
    for j in range(3):
        a(f"v_pk_add_f32 {vr(CSR+8*j,2)}, {vr(CSR+8*j,2)}, {vr(CSR+8*j+4,2)}")
        a(f"v_pk_add_f32 {vr(CSR+8*j+2,2)}, {vr(CSR+8*j+2,2)}, {vr(CSR+8*j+6,2)}")
    for i in range(8):
        a(f"s_add_u32 s36, s35, {i}\ns_and_b32 s36, s36, 7\ns_lshl_b32 s36, s36, 8\ns_add_u32 s36, s36, {STO}")
        a(f"v_add_u32 v{ra+i}, s36, v{t0}")
    ho = [wo, wo+1]
    a(f"v_bfe_u32 v{t1}, v0, 4, 2")
    a(f"v_add_u32 v{t1}, s35, v{t1}")
    a("s_lshl_b32 s36, s21, 11")
    for g in range(2):
        a(f"v_add_u32 v{t2}, {4*g}, v{t1}")
        a(f"v_and_b32 v{t2}, 7, v{t2}")
        a(f"v_lshl_add_u32 v{ho[g]}, v{t2}, 8, v{t0}")
        a(f"v_add_u32 v{ho[g]}, s36, v{ho[g]}")
    a("s_waitcnt lgkmcnt(0)\ns_barrier")
    st()
    KC_ = XF[1]
    for i in range(8):
        a(f"ds_read_b128 {vr(KC_+4*i,4)}, v{ra+i}")
    HP = T
    tp = [T+24, T+26, T+28, T+30]
    for g in range(2):
        if g == 0:
            a("s_waitcnt lgkmcnt(4)")
        else:
            a("s_waitcnt lgkmcnt(0)")
        for j in range(3):
            cs = CSR + 8*j
            for i2 in range(0, 4, 2):
                seqs = []
                for u in range(2):
                    i = 4*g + i2 + u
                    c = ACC + (i*3+j)*4
                    k = KC_ + 4*i
                    ta, tb = tp[2*u], tp[2*u+1]
                    G, U = c, c+2
                    seqs.append([
                        f"v_pk_fma_f32 {vr(G,2)}, {vr(cs,2)}, {vr(k,2)}, {vr(G,2)} op_sel:[0,0,0] op_sel_hi:[1,0,1]",
                        f"v_pk_fma_f32 {vr(U,2)}, {vr(cs+2,2)}, {vr(k,2)}, {vr(U,2)} op_sel:[0,0,0] op_sel_hi:[1,0,1]",
                        f"v_pk_mul_f32 {vr(ta,2)}, {vr(G,2)}, {vr(G,2)}",
                        f"v_pk_mul_f32 {vr(U,2)}, {vr(U,2)}, {vr(G,2)}",
                        f"v_pk_fma_f32 {vr(ta,2)}, {vr(ta,2)}, {vr(k+2,2)}, {vr(k,2)} op_sel:[0,0,1] op_sel_hi:[1,0,1]",
                        f"v_pk_mul_f32 {vr(ta,2)}, {vr(ta,2)}, {vr(G,2)}",
                        f"v_exp_f32 v{ta}, v{ta}",
                        f"v_exp_f32 v{ta+1}, v{ta+1}",
                        f"v_pk_fma_f32 {vr(ta,2)}, {vr(ta,2)}, {vr(k+2,2)}, {vr(k+2,2)} op_sel:[0,1,1] op_sel_hi:[1,1,1]",
                        f"v_rcp_f32 v{ta}, v{ta}",
                        f"v_rcp_f32 v{ta+1}, v{ta+1}",
                        f"v_pk_mul_f32 {vr(U,2)}, {vr(U,2)}, {vr(ta,2)}",
                        f"v_cvt_pk_bf16_f32 v{HP+(g*3+j)*4+i2+u}, v{U}, v{U+1}",
                    ])
                for x_, y_ in zip(*seqs):
                    a(x_); a(y_)
            p = HP + (g*3+j)*4
            a(f"v_permlane32_swap_b32 v{p}, v{p+2}")
            a(f"v_permlane32_swap_b32 v{p+1}, v{p+3}")
            a(f"v_permlane16_swap_b32 v{p}, v{p+1}")
            a(f"v_permlane16_swap_b32 v{p+2}, v{p+3}")
            a(f"buffer_store_dwordx4 {vr(p,4)}, v{ho[g]}, s[{56+4*j}:{59+4*j}], 0 offen")
    st.flush(t0, t1, 79)
    a.label("G1_END")
    a("s_endpgm")
    return a.lines(), V.hi, 192, LDS


def k_g2():
    a = Asm()
    RED = 0
    TRO = 65536
    TRS = 80
    LDS = TRO + 4 * 32 * TRS
    a.label("G2_BODY")
    a("s_cmp_ge_u32 s2, 256\ns_cbranch_scc1 G2_END")
    st = Stamps(a, 3)
    st()
    a("s_load_dwordx2 s[4:5], s[0:1], 104")
    a("s_load_dwordx2 s[6:7], s[0:1], 88")
    V = Alloc(1)
    t0, t1, t2, t3 = V(), V(), V(), V()
    a(f"v_lshrrev_b32 v{t0}, 6, v0")
    a(f"v_readfirstlane_b32 s20, v{t0}")
    a("s_and_b32 s21, s2, 3\ns_lshl_b32 s21, s21, 3\ns_bfe_u32 s22, s2, 0x30003\ns_add_u32 s21, s21, s22")
    a("s_bfe_u32 s22, s2, 0x10002\ns_lshl_b32 s22, s22, 2\ns_lshr_b32 s23, s2, 6\ns_add_u32 s22, s22, s23")
    ao, bo = V(), V()
    a(f"v_and_b32 v{t0}, 31, v0")
    a(f"v_lshlrev_b32 v{t0}, 4, v{t0}")
    a(f"v_bfe_u32 v{t1}, v0, 5, 1")
    a(f"v_lshl_add_u32 v{ao}, v{t1}, 15, v{t0}")
    a(f"v_lshl_add_u32 v{bo}, v{t1}, 13, v{t0}")
    a(f"s_mul_i32 s24, s20, {22*65536}\ns_lshl_b32 s25, s21, 10\ns_add_u32 s24, s24, s25")
    a(f"v_add_u32 v{ao}, s24, v{ao}")
    a(f"s_mul_i32 s24, s20, {22*16384}\ns_lshl_b32 s25, s22, 10\ns_add_u32 s24, s24, s25")
    a(f"v_add_u32 v{bo}, s24, v{bo}")
    a("s_waitcnt lgkmcnt(0)")
    srd(a, 8, "s4", "s5", NT*32768, HB)
    srd(a, 12, "s4", "s5", NT*8192, WD)
    vm = Cnt(a, "vmcnt", 63)
    RING = 15
    a("s_mov_b32 s26, 0\ns_mov_b32 s27, 0")

    def fr(i):
        return (i % RING) * 16

    def issue(i):
        if i >= 20:
            if i == 20:
                a(f"v_add_u32 v{ao}, {20*65536}, v{ao}")
                a(f"v_add_u32 v{bo}, {20*16384}, v{bo}")
            else:
                a(f"v_add_u32 v{ao}, 65536, v{ao}")
                a(f"v_add_u32 v{bo}, 16384, v{bo}")
            sa = sb = "0"
        else:
            sa, sb = "s26", "s27"
        r = fr(i)
        a(f"buffer_load_dwordx4 a[{r}:{r+3}], v{ao}, s[8:11], {sa} offen"); vm.issue(i)
        a(f"buffer_load_dwordx4 a[{r+8}:{r+11}], v{bo}, s[12:15], {sb} offen"); vm.issue(i)
        a(f"buffer_load_dwordx4 a[{r+4}:{r+7}], v{ao}, s[8:11], {sa} offen offset:512"); vm.issue(i)
        a(f"buffer_load_dwordx4 a[{r+12}:{r+15}], v{bo}, s[12:15], {sb} offen offset:512"); vm.issue(i)
        if i < 19:
            a("s_add_u32 s26, s26, 65536\ns_add_u32 s27, s27, 16384")
    for i in range(RING):
        issue(i)
    srd(a, 16, "s4", "s5", 2097152, "s40")
    ro = V()
    a("s_and_b32 s24, s20, 1\ns_lshl_b32 s24, s24, 5\ns_lshl_b32 s25, s22, 6\ns_add_u32 s28, s24, s25")
    a("s_lshr_b32 s24, s20, 1\ns_lshl_b32 s24, s24, 5\ns_lshl_b32 s25, s21, 6\ns_add_u32 s29, s24, s25")
    a(f"v_and_b32 v{t0}, 31, v0")
    a(f"v_add_u32 v{t0}, s28, v{t0}")
    a(f"v_lshlrev_b32 v{ro}, 12, v{t0}")
    a(f"v_lshl_add_u32 v{ro}, v{t1}, 3, v{ro}")
    a("s_lshl_b32 s24, s29, 1")
    a(f"v_add_u32 v{ro}, s24, v{ro}")
    RES = V(8, 4)
    ACC = V(64, 4)
    st()
    for i in range(22):
        vm.wait(i)
        if i in (0, 7, 14): st()
        r = fr(i)
        for it in range(2):
            for jt in range(2):
                c = ACC + (it*2+jt)*16
                a(f"v_mfma_f32_32x32x16_bf16 {vr(c,16)}, a[{r+4*it}:{r+4*it+3}], a[{r+8+4*jt}:{r+8+4*jt+3}], {'0' if i == 0 else vr(c,16)}")
        if i + RING < 22:
            issue(i + RING)
        if i == 7:
            for g in range(4):
                a(f"buffer_load_dwordx2 {vr(RES+2*g,2)}, v{ro}, s[16:19], 0 offen offset:{16*g}"); vm.issue("res")
    st()
    wa, rda = V(), V()
    a(f"v_and_b32 v{t0}, 63, v0")
    a(f"v_lshlrev_b32 v{t0}, 4, v{t0}")
    a("s_lshl_b32 s24, s20, 14")
    a(f"v_add_u32 v{wa}, s24, v{t0}")
    a("s_lshl_b32 s24, s20, 12")
    a(f"v_add_u32 v{rda}, s24, v{t0}")
    for tl in range(4):
        for g in range(4):
            a(f"ds_write_b128 v{wa}, {vr(ACC+tl*16+g*4,4)} offset:{tl*4096+g*1024}")
    twa, tra, oo = V(), V(), V()
    a(f"s_mul_i32 s24, s20, {32*TRS}\ns_add_u32 s24, s24, {TRO}")
    a(f"v_and_b32 v{t0}, 31, v0")
    a(f"v_mul_u32_u24 v{twa}, {TRS}, v{t0}")
    a(f"v_lshl_add_u32 v{twa}, v{t1}, 3, v{twa}")
    a(f"v_add_u32 v{twa}, s24, v{twa}")
    a(f"v_bfe_u32 v{t0}, v0, 4, 2")
    a(f"v_bfe_u32 v{t2}, v0, 2, 2")
    a(f"v_lshl_add_u32 v{t2}, v{t0}, 3, v{t2}")
    a(f"v_mul_u32_u24 v{tra}, {TRS}, v{t2}")
    a(f"v_and_b32 v{t2}, 3, v0")
    a(f"v_lshl_add_u32 v{tra}, v{t2}, 3, v{tra}")
    a(f"v_add_u32 v{tra}, s24, v{tra}")
    a("s_waitcnt lgkmcnt(0)\ns_barrier")
    P = ACC
    for w in range(4):
        for g in range(4):
            a(f"ds_read_b128 {vr(P+w*16+g*4,4)}, v{rda} offset:{w*16384+g*1024}")
    vm.wait("res")
    XR = V(16, 2)
    for g in range(4):
        for p in range(2):
            a(f"v_lshlrev_b32 v{XR+4*g+2*p}, 16, v{RES+2*g+p}")
            a(f"v_and_b32 v{XR+4*g+2*p+1}, 0xffff0000, v{RES+2*g+p}")
    a("s_waitcnt lgkmcnt(8)")
    for k in range(8):
        a(f"v_pk_add_f32 {vr(P+2*k,2)}, {vr(P+2*k,2)}, {vr(P+16+2*k,2)}")
    a("s_waitcnt lgkmcnt(0)")
    for k in range(8):
        a(f"v_pk_add_f32 {vr(P+32+2*k,2)}, {vr(P+32+2*k,2)}, {vr(P+48+2*k,2)}")
    for k in range(8):
        a(f"v_pk_add_f32 {vr(P+2*k,2)}, {vr(P+2*k,2)}, {vr(P+32+2*k,2)}")
    for k in range(8):
        a(f"v_cvt_pk_bf16_f32 v{P+16+k}, v{P+2*k}, v{P+2*k+1}")
    for k in range(8):
        a(f"v_lshlrev_b32 v{P+2*k}, 16, v{P+16+k}")
        a(f"v_and_b32 v{P+2*k+1}, 0xffff0000, v{P+16+k}")
    for k in range(8):
        a(f"v_pk_add_f32 {vr(P+2*k,2)}, {vr(P+2*k,2)}, {vr(XR+2*k,2)}")
    for k in range(8):
        a(f"v_cvt_pk_bf16_f32 v{RES+k}, v{P+2*k}, v{P+2*k+1}")
    for g in range(4):
        a(f"ds_write_b64 v{twa}, {vr(RES+2*g,2)} offset:{16*g}")
    st.flush(t0, t2, 79)
    a("s_cmp_eq_u32 s41, 1\ns_cbranch_scc1 G2_FINAL")
    srd(a, 16, "s4", "s5", 2097152, XT2)
    for g in range(4):
        a(f"buffer_store_dwordx2 {vr(RES+2*g,2)}, v{ro}, s[16:19], 0 offen offset:{16*g}")
    srd(a, 20, "s4", "s5", 16384, ST2)
    a("s_waitcnt lgkmcnt(0)")
    TT = P + 32
    for lt in range(2):
        for h in range(2):
            a(f"ds_read_b64_tr_b16 {vr(TT+4*lt+2*h,2)}, v{tra} offset:{32*lt+4*h*TRS}")
    SS = P
    for i in range(4):
        a(f"v_mov_b32 v{SS+i}, 0")
    a(f"v_mov_b32 v{t3}, {ONES_BF16}")
    a("s_waitcnt lgkmcnt(0)")
    for k in range(4):
        for lt in range(2):
            a(f"v_dot2c_f32_bf16 v{SS+lt}, v{TT+4*lt+k}, v{t3}")
            a(f"v_dot2c_f32_bf16 v{SS+2+lt}, v{TT+4*lt+k}, v{TT+4*lt+k}")
    a(f"v_permlane32_swap_b32 v{SS}, v{SS+2}")
    a(f"v_permlane32_swap_b32 v{SS+1}, v{SS+3}")
    a(f"v_add_f32 v{SS}, v{SS}, v{SS+2}")
    a(f"v_add_f32 v{SS+1}, v{SS+1}, v{SS+3}")
    a(f"v_permlane16_swap_b32 v{SS}, v{SS+1}")
    a(f"v_add_f32 v{SS}, v{SS}, v{SS+1}")
    a(f"v_and_b32 v{t0}, 31, v0")
    a(f"v_add_u32 v{t0}, s29, v{t0}")
    a(f"v_lshlrev_b32 v{t0}, 2, v{t0}")
    a(f"v_lshl_add_u32 v{t0}, v{t1}, 13, v{t0}")
    a(f"buffer_atomic_add_f32 v{SS}, v{t0}, s[20:23], 0 offen")
    a("s_endpgm")
    a.label("G2_FINAL")
    srd(a, 16, "s6", "s7", 2097152)
    a(f"v_and_b32 v{t0}, 15, v0")
    a(f"v_add_u32 v{t0}, s29, v{t0}")
    a(f"v_lshlrev_b32 v{oo}, 10, v{t0}")
    a(f"v_and_b32 v{t0}, 0x30, v0")
    a(f"v_add_u32 v{oo}, v{oo}, v{t0}")
    a("s_lshl_b32 s24, s28, 1")
    a(f"v_add_u32 v{oo}, s24, v{oo}")
    a("s_movk_i32 s25, 0x4000")
    a("s_waitcnt lgkmcnt(0)")
    for lt in range(2):
        for h in range(2):
            a(f"ds_read_b64_tr_b16 {vr(TT+4*lt+2*h,2)}, v{tra} offset:{32*lt+4*h*TRS}")
    a("s_waitcnt lgkmcnt(2)")
    a(f"buffer_store_dwordx4 {vr(TT,4)}, v{oo}, s[16:19], 0 offen")
    a("s_waitcnt lgkmcnt(0)")
    a(f"buffer_store_dwordx4 {vr(TT+4,4)}, v{oo}, s[16:19], s25 offen")
    a.label("G2_END")
    a("s_endpgm")
    return a.lines(), V.hi, RING*16, LDS


def build(extra_launch=None):
    ref = open(f"cdna_kernels/{NAME}.s.ref").read().split("\n")
    hdr = [l for l in ref if l.startswith(";") and "@launch" not in l and not l.startswith("; Override") and not l.startswith("; grid=")]
    hdr = hdr[:15]
    P, C, G1, G2 = k_prep(), k_conv(), k_g1(), k_g2()
    launches = [("prep_kernel", 492, P), ("conv1_kernel", 256, C), ("g1a_kernel", 256, G1), ("g2a_kernel", 256, G2),
                ("conv2_kernel", 256, C), ("g1b_kernel", 256, G1), ("g2b_kernel", 256, G2)]
    out = list(hdr)
    for n, g, k in launches:
        out.append(f"; @launch kernel={n} grid=({g},1,1) block=(256,1,1) lds={k[3]}")
    out.append('.amdgcn_target "amdgcn-amd-amdhsa--gfx950"')
    out.append(".text")

    def entry(n, body):
        out.append(f".globl {n}\n.p2align 8\n.type {n},@function\n{n}:")
        out.extend(body)
    entry("prep_kernel", insert_nops_fast(P[0]))

    def stub(sets, tgt):
        return [f"    s_mov_b32 s{r}, {v:#x}" for r, v in sets] + ([f"    s_branch {tgt}"] if tgt else [])
    entry("conv2_kernel", stub([(40, XT2), (41, ST2), (42, XT3), (79, 0x30000)], "C_BODY"))
    entry("conv1_kernel", stub([(40, XT0), (41, ST0), (42, XT1), (79, 0)], None) + insert_nops_fast(C[0]))
    entry("g1b_kernel", stub([(40, XT3), (79, 0x30000)], "G1_BODY"))
    entry("g1a_kernel", stub([(40, XT1), (79, 0)], None) + insert_nops_fast(G1[0]))
    entry("g2b_kernel", stub([(40, XT3), (41, 1), (79, 0x30000)], "G2_BODY"))
    entry("g2a_kernel", stub([(40, XT1), (41, 0), (79, 0)], None) + insert_nops_fast(G2[0]))
    out.append('.section .rodata,"a"')
    seen = set()
    for n, g, k in launches:
        if n in seen: continue
        seen.add(n)
        out.append(".p2align 6")
        out.append(kernel_desc(n, k[1], k[2], 102 if STAMP else 80))
    return "\n".join(out) + "\n"


if __name__ == "__main__":
    if len(sys.argv) > 1 and sys.argv[1] == "stamp":
        STAMP = True
    s = build()
    open(f"stamp.s" if STAMP else f"cdna_kernels/{NAME}.s", "w").write(s)
    print("written", len(s), "bytes")
```
